```python
import torch

def _softmax(x, axis=-1):
    return torch.softmax(x, dim=axis)
def _gelu(x):
    return torch.nn.functional.gelu(x, approximate="tanh")
def _silu(x):
    return torch.nn.functional.silu(x)
def _sigmoid(x):
    return torch.sigmoid(x)
def _layernorm(x, axis=-1, eps=1e-5):
    m = x.mean(dim=axis, keepdim=True)
    v = x.var(dim=axis, keepdim=True, unbiased=False)
    return (x - m) / torch.sqrt(v + eps)
def _scatter_add(tgt, idx, src, axis=0):
    return tgt.clone().index_add_(axis, idx, src)
def _segment_sum(src, seg, n):
    out = torch.zeros((n,) + src.shape[1:], dtype=src.dtype)
    return out.index_add_(0, seg, src)
def _pad(x, pw):
    flat = tuple(v for pair in reversed(pw) for v in pair)
    return torch.nn.functional.pad(x, flat)

kernel_name = 'sequential_preLN__gqa_block_cached__dense_activation_squared_relu__decode'

def setup_inputs():

    _w = (lambda a: (lambda t: t.to(torch.bfloat16) if t.is_floating_point() else t)(torch.as_tensor(a)))
    def _A_setup():
        B, Sq, D = 1, 1, 512
        Hq, Hkv, Sk, Dh = 32, 8, 65536, 128
        assert Hq % Hkv == 0, (Hq, Hkv)
        return {
            "x": _w((lambda *s: torch.randn(*s, dtype=torch.bfloat16) * 0.05)(B, Sq, D)),
            "k_cache": _w((lambda *s: torch.randn(*s, dtype=torch.bfloat16) * 3.2)(B, Hkv, Sk, Dh)),
            "v_cache": _w((lambda *s: torch.randn(*s, dtype=torch.bfloat16) * 0.4)(B, Hkv, Sk, Dh)),
            "wq": _w((lambda *s: torch.randn(*s, dtype=torch.bfloat16) * 3.2)(D, Hq * Dh) * (D ** -0.5)),
            "wo": _w((lambda *s: torch.randn(*s, dtype=torch.bfloat16) * 0.4)(Hq * Dh, D) * ((Hq * Dh) ** -0.5)),
        }
    _A_in = _A_setup()

    def _B_setup():
        B, S, D, F = 1, 1, 512, 1792
        return {
            "x": _w((lambda *s: torch.randn(*s, dtype=torch.bfloat16) * 0.05)(B, S, D)),
            "w1": _w((lambda *s: torch.randn(*s, dtype=torch.bfloat16) * 0.05)(D, F)),
            "b1": _w((lambda *s: torch.randn(*s, dtype=torch.bfloat16) * 0.8)(F)),
            "w2": _w((lambda *s: torch.randn(*s, dtype=torch.bfloat16) * 0.05)(F, D)),
            "b2": _w((lambda *s: torch.randn(*s, dtype=torch.bfloat16) * 3.2)(D)),
        }
    _B_in = _B_setup()

    return {
        "A_x": _A_in["x"],
        "A_k_cache": _A_in["k_cache"],
        "A_v_cache": _A_in["v_cache"],
        "A_wq": _A_in["wq"],
        "A_wo": _A_in["wo"],
        "B_x": _B_in["x"],
        "B_w1": _B_in["w1"],
        "B_b1": _B_in["b1"],
        "B_w2": _B_in["w2"],
        "B_b2": _B_in["b2"],
    }

def reference(A_x, A_k_cache, A_v_cache, A_wq, A_wo, B_x, B_w1, B_b1, B_w2, B_b2):
    def _A_ref(x, k_cache, v_cache, wq, wo):
        B, Sq, D = x.shape
        Hq, Dh = 32, 128
        Hkv = k_cache.shape[1]
        rep = Hq // Hkv
        q = (lambda x, *d: x.permute(*d))((x @ wq).reshape(B, Sq, Hq, Dh), 0, 2, 1, 3)
        k = (lambda x, n, axis: torch.repeat_interleave(x, n, dim=axis))(k_cache, rep, axis=1)
        v = (lambda x, n, axis: torch.repeat_interleave(x, n, dim=axis))(v_cache, rep, axis=1)
        scores = torch.einsum("bhqd,bhkd->bhqk", q, k) * (Dh ** -0.5)
        p = _softmax(scores, axis=-1)
        o = torch.einsum("bhqk,bhkd->bhqd", p, v)
        return (lambda x, *d: x.permute(*d))(o, 0, 2, 1, 3).reshape(B, Sq, Hq * Dh) @ wo

    def _B_ref(x, w1, b1, w2, b2):
        h = torch.einsum("bsd,df->bsf", x, w1) + b1
        zero = torch.zeros_like(h)
        r = torch.where(h > zero, h, zero)
        h = r * r
        out = torch.einsum("bsf,fd->bsd", h, w2) + b2
        return out

    x = A_x
    h = x + _A_ref(_layernorm(x, axis=-1), A_k_cache, A_v_cache, A_wq, A_wo)
    h2 = h + _B_ref(_layernorm(h, axis=-1), B_w1, B_b1, B_w2, B_b2)
    return h2
```

```python
import sys

NAME = "sequential_preLN__gqa_block_cached__dense_activation_squared_relu__decode"

HEADER = open("cdna_kernels/%s.s.ref" % NAME).read().split("; Override launch geometry")[0]

Q_OFF = 0
PART_OFF = 65536
ML_OFF = PART_OFF + 32*32*512
WOP_OFF = ML_OFF + 32*32*8
H_OFF = WOP_OFF + 32*512*4
FFP_OFF = H_OFF + 2048

LOG2E = 0x3fb8aa3b
SCALE = 0x3db504f3

out = []
def E(s=""):
    out.append(s)

def srd(dst, base, nbytes):
    E(f"    s_mov_b32 s{dst}, s{base}")
    E(f"    s_and_b32 s{dst+1}, s{base+1}, 0xffff")
    E(f"    s_mov_b32 s{dst+2}, {nbytes}")
    E(f"    s_mov_b32 s{dst+3}, 0x00020000")

def wave_reduce(op, v, tmp, full=True):
    for dpp in ("quad_perm:[1,0,3,2]", "quad_perm:[2,3,0,1]", "row_half_mirror", "row_mirror"):
        E("    s_nop 1")
        E(f"    {op}_dpp v{v}, v{v}, v{v} {dpp} row_mask:0xf bank_mask:0xf")
    E(f"    v_mov_b32 v{tmp}, v{v}")
    E("    s_nop 1")
    E(f"    v_permlane16_swap_b32 v{v}, v{tmp}")
    E("    s_nop 1")
    E(f"    {op} v{v}, v{v}, v{tmp}")
    if full:
        E(f"    v_mov_b32 v{tmp}, v{v}")
        E("    s_nop 1")
        E(f"    v_permlane32_swap_b32 v{v}, v{tmp}")
        E("    s_nop 1")
        E(f"    {op} v{v}, v{v}, v{tmp}")

def rnd_bf16(v):
    E(f"    v_cvt_pk_bf16_f32 v{v}, v{v}, v{v}")
    E(f"    v_lshlrev_b32 v{v}, 16, v{v}")

def kd(name, vgpr, sgpr=102):
    acc = (vgpr + 3)//4*4
    E('.section .rodata,"a"')
    E(".p2align 6")
    E(f".amdhsa_kernel {name}")
    E(f"  .amdhsa_next_free_vgpr {vgpr}")
    E(f"  .amdhsa_next_free_sgpr {sgpr}")
    E(f"  .amdhsa_accum_offset {acc}")
    E("  .amdhsa_group_segment_fixed_size 0")
    E("  .amdhsa_kernarg_size 104")
    E("  .amdhsa_user_sgpr_count 2")
    E("  .amdhsa_user_sgpr_kernarg_segment_ptr 1")
    E("  .amdhsa_system_sgpr_workgroup_id_x 1")
    E(".end_amdhsa_kernel")
    E(".text")

def kstart(name):
    E(f".globl {name}")
    E(".p2align 8")
    E(f".type {name},@function")
    E(f"{name}:")

def layernorm_stats(vals, s_n_inv, vsum, vtmp, vmean_b, vden):
    E(f"    v_add_f32 v{vsum}, v{vals[0]}, v{vals[1]}")
    for v in vals[2:]:
        E(f"    v_add_f32 v{vsum}, v{vsum}, v{v}")
    wave_reduce("v_add_f32", vsum, vtmp)
    E(f"    v_mul_f32 v{vsum}, s{s_n_inv}, v{vsum}      ; mean (f32)")
    E(f"    v_sub_f32 v{vtmp}, v{vals[0]}, v{vsum}")
    E(f"    v_mul_f32 v{vden}, v{vtmp}, v{vtmp}")
    for v in vals[1:]:
        E(f"    v_sub_f32 v{vtmp}, v{v}, v{vsum}")
        E(f"    v_fmac_f32 v{vden}, v{vtmp}, v{vtmp}")
    wave_reduce("v_add_f32", vden, vtmp)
    E(f"    v_mul_f32 v{vden}, s{s_n_inv}, v{vden}      ; var (f32)")
    rnd_bf16(vden)
    E(f"    v_add_f32 v{vden}, 0x3727c5ac, v{vden}     ; + 1e-5")
    rnd_bf16(vden)
    E(f"    v_sqrt_f32 v{vden}, v{vden}")
    E("    s_nop 0")
    rnd_bf16(vden)
    E(f"    v_mov_b32 v{vmean_b}, v{vsum}")
    rnd_bf16(vmean_b)

def div_rnd(vnum, vden, vt0, vt1, vt2):
    E(f"    v_rcp_f32 v{vt0}, v{vden}")
    E("    s_nop 0")
    E(f"    v_mul_f32 v{vt1}, v{vnum}, v{vt0}          ; q0")
    E(f"    v_fma_f32 v{vt2}, -v{vt1}, v{vden}, v{vnum} ; r = n - q0*d")
    E(f"    v_fma_f32 v{vnum}, v{vt2}, v{vt0}, v{vt1}   ; q1")
    rnd_bf16(vnum)

def k1():
    name = "k1_qproj_kernel"
    kstart(name)
    E("    s_cmp_ge_u32 s2, 128")
    E("    s_cbranch_scc1 k1_end")
    E("    s_load_dwordx2 s[4:5], s[0:1], 0       ; x")
    E("    s_load_dwordx2 s[6:7], s[0:1], 24      ; wq")
    E("    s_load_dwordx2 s[8:9], s[0:1], 96      ; ws")
    E("    v_lshrrev_b32 v1, 2, v0                ; rg")
    E("    v_and_b32 v2, 3, v0                    ; c")
    E("    v_lshlrev_b32 v3, 16, v1               ; rg*8*8192")
    E("    v_lshl_add_u32 v3, v2, 4, v3           ; + c*16")
    E("    s_lshl_b32 s3, s2, 6")
    E("    v_add_u32 v3, s3, v3")
    E("    v_and_b32 v4, 63, v0")
    E("    v_lshlrev_b32 v4, 4, v4                ; lane*16")
    E("    v_lshlrev_b32 v5, 4, v1                ; rg*16")
    E("    s_waitcnt lgkmcnt(0)")
    srd(12, 4, 1024)
    srd(16, 6, 512*4096*2)
    srd(20, 8, 536870912)
    E("    buffer_load_dwordx4 v[8:11], v4, s[12:15], 0 offen")
    E("    buffer_load_dwordx4 v[12:15], v5, s[12:15], 0 offen")
    for p in range(8):
        E(f"    s_mov_b32 s{24+p}, {p*8192}")
    for p in range(8):
        E(f"    buffer_load_dwordx4 v[{32+4*p}:{35+4*p}], v3, s[16:19], s{24+p} offen")
    E("    s_mov_b32 s32, 0x3b000000              ; 1/512")
    E("    s_waitcnt vmcnt(9)")
    for d in range(4):
        E(f"    v_lshlrev_b32 v{16+2*d}, 16, v{8+d}")
        E(f"    v_and_b32 v{17+2*d}, 0xffff0000, v{8+d}")
    layernorm_stats(list(range(16, 24)), 32, 24, 25, 26, 27)
    E("    s_waitcnt vmcnt(8)")
    for d in range(4):
        E(f"    v_lshlrev_b32 v{16+2*d}, 16, v{12+d}")
        E(f"    v_and_b32 v{17+2*d}, 0xffff0000, v{12+d}")
    for i in range(8):
        E(f"    v_sub_f32 v{16+i}, v{16+i}, v26")
        rnd_bf16(16+i)
        div_rnd(16+i, 27, 28, 29, 30)
    for i in range(8):
        E(f"    v_mov_b32 v{64+i}, 0")
    for p in range(8):
        E(f"    s_waitcnt vmcnt({7-p})")
        for d in range(4):
            E(f"    v_lshlrev_b32 v28, 16, v{32+4*p+d}")
            E(f"    v_and_b32 v29, 0xffff0000, v{32+4*p+d}")
            E(f"    v_fmac_f32 v{64+2*d}, v{16+p}, v28")
            E(f"    v_fmac_f32 v{65+2*d}, v{16+p}, v29")
    for i in range(8):
        v = 64+i
        E("    s_nop 1")
        E(f"    v_add_f32_dpp v{v}, v{v}, v{v} row_ror:4 row_mask:0xf bank_mask:0xf")
        E("    s_nop 1")
        E(f"    v_add_f32_dpp v{v}, v{v}, v{v} row_ror:8 row_mask:0xf bank_mask:0xf")
        E(f"    v_mov_b32 v28, v{v}")
        E("    s_nop 1")
        E(f"    v_permlane16_swap_b32 v{v}, v28")
        E("    s_nop 1")
        E(f"    v_add_f32 v{v}, v{v}, v28")
        E(f"    v_mov_b32 v28, v{v}")
        E("    s_nop 1")
        E(f"    v_permlane32_swap_b32 v{v}, v28")
        E("    s_nop 1")
        E(f"    v_add_f32 v{v}, v{v}, v28")
    E("    v_lshrrev_b32 v6, 6, v0                ; wave")
    E("    v_lshlrev_b32 v6, 7, v6                ; wave*128 B")
    E("    v_lshl_add_u32 v6, v2, 5, v6           ; + c*32")
    E("    v_and_b32 v7, 63, v0")
    E("    v_cmp_gt_u32 vcc, 4, v7")
    E("    s_and_saveexec_b64 s[34:35], vcc")
    E("    ds_write_b128 v6, v[64:67]")
    E("    ds_write_b128 v6, v[68:71] offset:16")
    E("    s_mov_b64 exec, s[34:35]")
    E("    s_waitcnt lgkmcnt(0)")
    E("    s_barrier")
    E("    v_cmp_gt_u32 vcc, 32, v0")
    E("    s_and_saveexec_b64 s[34:35], vcc")
    E("    s_cbranch_execz k1_end")
    E("    v_lshlrev_b32 v6, 2, v0")
    E("    ds_read_b32 v8, v6")
    E("    ds_read_b32 v9, v6 offset:128")
    E("    ds_read_b32 v10, v6 offset:256")
    E("    ds_read_b32 v11, v6 offset:384")
    E("    s_waitcnt lgkmcnt(0)")
    E("    v_add_f32 v8, v8, v9")
    E("    v_add_f32 v10, v10, v11")
    E("    v_add_f32 v8, v8, v10")
    E("    v_cvt_pk_bf16_f32 v8, v8, v8")
    E("    v_lshlrev_b32 v6, 1, v0")
    E(f"    v_add_u32 v6, s3, v6                   ; wg*64 + t*2")
    E(f"    buffer_store_short v8, v6, s[20:23], 0 offen offset:{Q_OFF}")
    E("k1_end:")
    E("    s_endpgm")
    kd(name, 72)

def k2():
    name = "k2_attn_kernel"
    NIT = 8
    kstart(name)
    KB = [0+16, 0]
    Q0 = 16
    K0 = [32, 64]
    V0 = [96, 128]
    VT = 160
    O0 = 192
    S0 = 224
    P0 = 232
    M, L, AL, T0, T1, T2, T3 = 236, 237, 238, 239, 240, 241, 242
    MN = 243
    E("    s_cmp_ge_u32 s2, 256")
    E("    s_cbranch_scc1 k2_end")
    E("    s_load_dwordx2 s[4:5], s[0:1], 8       ; k")
    E("    s_load_dwordx2 s[6:7], s[0:1], 16      ; v")
    E("    s_load_dwordx2 s[8:9], s[0:1], 96      ; ws")
    E("    v_and_b32 v1, 15, v0                   ; r")
    E("    v_bfe_u32 v2, v0, 4, 2                 ; g")
    E("    v_lshrrev_b32 v3, 6, v0                ; wave")
    E("    v_lshrrev_b32 v4, 2, v1")
    E("    v_lshlrev_b32 v4, 11, v4")
    E("    v_and_b32 v5, 3, v1")
    E("    v_lshl_add_u32 v4, v5, 8, v4")
    E("    v_lshl_add_u32 v4, v2, 4, v4")
    E("    v_lshl_add_u32 v4, v3, 13, v4          ; vK")
    E("    v_lshlrev_b32 v5, 11, v2")
    E("    v_lshl_add_u32 v5, v1, 4, v5")
    E("    v_lshl_add_u32 v5, v3, 13, v5          ; vV")
    E("    s_lshr_b32 s10, s2, 5                  ; kvh")
    E("    s_and_b32 s11, s2, 31                  ; split")
    E("    s_lshl_b32 s3, s10, 10                 ; kvh*4*256")
    E("    v_lshlrev_b32 v6, 8, v1")
    E("    v_lshl_add_u32 v6, v2, 4, v6")
    E("    v_add_u32 v6, s3, v6")
    E("    v_mov_b32 v7, 0x7fffffff")
    E("    v_cmp_gt_u32 vcc, 4, v1")
    E("    s_nop 1")
    E("    v_cndmask_b32 v6, v7, v6, vcc")
    E("    s_lshl_b32 s12, s10, 24")
    E("    s_lshl_b32 s13, s11, 19")
    E("    s_add_u32 s12, s12, s13")
    E("    s_waitcnt lgkmcnt(0)")
    E("    s_add_u32 s4, s4, s12")
    E("    s_addc_u32 s5, s5, 0")
    E("    s_add_u32 s6, s6, s12")
    E("    s_addc_u32 s7, s7, 0")
    srd(16, 4, 524288)
    srd(20, 6, 524288)
    srd(24, 8, 536870912)
    for j in range(4):
        E(f"    buffer_load_dwordx4 v[{Q0+4*j}:{Q0+4*j+3}], v6, s[24:27], 0 offen offset:{Q_OFF + j*64}")
    E("    s_mov_b32 s28, 0x05040100")
    E("    s_mov_b32 s29, 0x07060302")
    E(f"    s_mov_b32 s30, {SCALE}")
    E(f"    s_mov_b32 s31, {LOG2E}")
    for it in range(NIT):
        E(f"    s_mov_b32 s{40+it}, {it*65536}")

    def loadK(it):
        st = it & 1
        for t in range(2):
            for j in range(4):
                b = K0[st] + (t*4+j)*4
                E(f"    buffer_load_dwordx4 v[{b}:{b+3}], v4, s[16:19], s{40+it} offen offset:{t*1024+j*64} nt")
    def loadV(it):
        st = it & 1
        for i in range(8):
            b = V0[st] + i*4
            E(f"    buffer_load_dwordx4 v[{b}:{b+3}], v5, s[20:23], s{40+it} offen offset:{i*256} nt")

    loadK(0); loadV(0); loadK(1); loadV(1)
    E(f"    v_mov_b32 v{M}, 0xff800000")
    E(f"    v_mov_b32 v{L}, 0")
    for i in range(32):
        E(f"    v_mov_b32 v{O0+i}, 0")

    for it in range(NIT):
        st = it & 1
        rem_after_K = 8 + (16 if it+1 < NIT else 0)
        E(f"    s_waitcnt vmcnt({rem_after_K})")
        for t in range(2):
            for j in range(4):
                b = K0[st] + (t*4+j)*4
                c = "0" if j == 0 else f"v[{S0+4*t}:{S0+4*t+3}]"
                E(f"    v_mfma_f32_16x16x32_bf16 v[{S0+4*t}:{S0+4*t+3}], v[{b}:{b+3}], v[{Q0+4*j}:{Q0+4*j+3}], {c}")
        if it+2 < NIT:
            loadK(it+2)
        E("    s_nop 7")
        E("    s_nop 3")
        for pr in range(4):
            a, b = S0+2*pr, S0+2*pr+1
            E(f"    v_cvt_pk_bf16_f32 v{T0}, v{a}, v{b}")
            E(f"    v_lshlrev_b32 v{a}, 16, v{T0}")
            E(f"    v_and_b32 v{b}, 0xffff0000, v{T0}")
            E(f"    v_mul_f32 v{a}, s30, v{a}")
            E(f"    v_mul_f32 v{b}, s30, v{b}")
            E(f"    v_cvt_pk_bf16_f32 v{T0}, v{a}, v{b}")
            E(f"    v_lshlrev_b32 v{a}, 16, v{T0}")
            E(f"    v_and_b32 v{b}, 0xffff0000, v{T0}")
        E(f"    v_max3_f32 v{T0}, v{S0}, v{S0+1}, v{S0+2}")
        E(f"    v_max3_f32 v{T0}, v{T0}, v{S0+3}, v{S0+4}")
        E(f"    v_max3_f32 v{T0}, v{T0}, v{S0+5}, v{S0+6}")
        E(f"    v_max_f32 v{T0}, v{T0}, v{S0+7}")
        E(f"    v_mov_b32 v{T1}, v{T0}")
        E("    s_nop 1")
        E(f"    v_permlane16_swap_b32 v{T0}, v{T1}")
        E("    s_nop 1")
        E(f"    v_max_f32 v{T0}, v{T0}, v{T1}")
        E(f"    v_mov_b32 v{T1}, v{T0}")
        E("    s_nop 1")
        E(f"    v_permlane32_swap_b32 v{T0}, v{T1}")
        E("    s_nop 1")
        E(f"    v_max3_f32 v{MN}, v{T0}, v{T1}, v{M}     ; m_new")
        E(f"    v_sub_f32 v{AL}, v{M}, v{MN}")
        E(f"    v_mul_f32 v{AL}, s31, v{AL}")
        E(f"    v_exp_f32 v{AL}, v{AL}                   ; alpha")
        E(f"    v_mov_b32 v{M}, v{MN}")
        E(f"    v_mul_f32 v{T2}, s31, v{MN}              ; m*log2e")
        for i in range(8):
            E(f"    v_fma_f32 v{S0+i}, v{S0+i}, s31, -v{T2}")
        for i in range(8):
            E(f"    v_exp_f32 v{S0+i}, v{S0+i}")
        E("    s_nop 0")
        E(f"    v_add_f32 v{T0}, v{S0}, v{S0+1}")
        E(f"    v_add_f32 v{T1}, v{S0+2}, v{S0+3}")
        E(f"    v_add_f32 v{T2}, v{S0+4}, v{S0+5}")
        E(f"    v_add_f32 v{T3}, v{S0+6}, v{S0+7}")
        E(f"    v_add_f32 v{T0}, v{T0}, v{T1}")
        E(f"    v_add_f32 v{T2}, v{T2}, v{T3}")
        E(f"    v_add_f32 v{T0}, v{T0}, v{T2}")
        E(f"    v_fma_f32 v{L}, v{L}, v{AL}, v{T0}")
        for q in range(4):
            E(f"    v_cvt_pk_bf16_f32 v{P0+q}, v{S0+2*q}, v{S0+2*q+1}")
        for i in range(32):
            E(f"    v_mul_f32 v{O0+i}, v{AL}, v{O0+i}")
        rem_after_V = (16 if it+1 < NIT else 0) + (8 if it+2 < NIT else 0)
        E(f"    s_waitcnt vmcnt({rem_after_V})")
        for d in range(4):
            for q in range(4):
                a = V0[st] + (2*q+1)*4 + d
                b = V0[st] + (2*q)*4 + d
                E(f"    v_perm_b32 v{VT + (2*d)*4 + q}, v{a}, v{b}, s28")
                E(f"    v_perm_b32 v{VT + (2*d+1)*4 + q}, v{a}, v{b}, s29")
        E("    s_nop 1")
        for e in range(8):
            E(f"    v_mfma_f32_16x16x32_bf16 v[{O0+4*e}:{O0+4*e+3}], v[{VT+4*e}:{VT+4*e+3}], v[{P0}:{P0+3}], v[{O0+4*e}:{O0+4*e+3}]")
        if it+2 < NIT:
            loadV(it+2)
        E("    s_nop 7")
        E("    s_nop 3")
    E(f"    v_mov_b32 v{T1}, v{L}")
    E("    s_nop 1")
    E(f"    v_permlane16_swap_b32 v{L}, v{T1}")
    E("    s_nop 1")
    E(f"    v_add_f32 v{L}, v{L}, v{T1}")
    E(f"    v_mov_b32 v{T1}, v{L}")
    E("    s_nop 1")
    E(f"    v_permlane32_swap_b32 v{L}, v{T1}")
    E("    s_nop 1")
    E(f"    v_add_f32 v{L}, v{L}, v{T1}")
    E("    v_lshlrev_b32 v8, 11, v3")
    E("    v_lshl_add_u32 v8, v1, 9, v8")
    E("    v_lshl_add_u32 v8, v2, 7, v8           ; + g*128")
    E("    v_lshlrev_b32 v9, 5, v3")
    E("    v_lshl_add_u32 v9, v1, 3, v9")
    E("    v_cmp_gt_u32 vcc, 4, v1")
    E("    s_and_saveexec_b64 s[34:35], vcc")
    for e in range(8):
        for jj in range(4):
            E(f"    ds_write_b32 v8, v{O0+4*e+jj} offset:{(jj*8+e)*4}")
    E(f"    v_mov_b32 v10, v{M}")
    E(f"    v_mov_b32 v11, v{L}")
    E("    ds_write_b64 v9, v[10:11] offset:16384")
    E("    s_mov_b64 exec, s[34:35]")
    E("    s_waitcnt lgkmcnt(0)")
    E("    s_barrier")
    E("    v_lshrrev_b32 v1, 7, v0                ; head")
    E("    v_and_b32 v2, 127, v0                  ; d")
    E("    v_lshlrev_b32 v3, 3, v1                ; head*8")
    for w in range(8):
        E(f"    ds_read_b64 v[{16+2*w}:{17+2*w}], v3 offset:{16384 + w*32}")
    E("    v_lshlrev_b32 v4, 9, v1")
    E("    v_lshl_add_u32 v4, v2, 2, v4")
    for w in range(8):
        E(f"    ds_read_b32 v{32+w}, v4 offset:{w*2048}")
    E("    s_waitcnt lgkmcnt(0)")
    E("    v_max3_f32 v5, v16, v18, v20")
    E("    v_max3_f32 v5, v5, v22, v24")
    E("    v_max3_f32 v5, v5, v26, v28")
    E("    v_max_f32 v5, v5, v30                  ; M")
    E("    v_mov_b32 v6, 0                        ; o")
    E("    v_mov_b32 v7, 0                        ; l")
    for w in range(8):
        E(f"    v_sub_f32 v8, v{16+2*w}, v5")
        E("    v_mul_f32 v8, s31, v8")
        E("    v_exp_f32 v8, v8")
        E("    s_nop 0")
        E(f"    v_fmac_f32 v6, v8, v{32+w}")
        E(f"    v_fmac_f32 v7, v8, v{17+2*w}")
    E("    s_lshl_b32 s12, s10, 7                 ; kvh*4*32")
    E("    s_add_u32 s12, s12, s11                ; + split")
    E("    v_lshlrev_b32 v9, 5, v1")
    E("    v_add_u32 v9, s12, v9")
    E("    v_lshlrev_b32 v10, 9, v9")
    E("    v_lshl_add_u32 v10, v2, 2, v10")
    E(f"    buffer_store_dword v6, v10, s[24:27], 0 offen offset:0")
    out[-1] = f"    s_mov_b32 s13, {PART_OFF}\n    buffer_store_dword v6, v10, s[24:27], s13 offen"
    E("    v_cmp_eq_u32 vcc, 0, v2")
    E("    s_and_saveexec_b64 s[34:35], vcc")
    E("    v_lshlrev_b32 v10, 3, v9")
    E("    v_mov_b32 v6, v5")
    E(f"    s_mov_b32 s13, {ML_OFF}")
    E("    buffer_store_dwordx2 v[6:7], v10, s[24:27], s13 offen")
    E("k2_end:")
    E("    s_endpgm")
    kd(name, 244)

def k3():
    name = "k3_wo_kernel"
    kstart(name)
    E("    s_cmp_ge_u32 s2, 256")
    E("    s_cbranch_scc1 k3_end")
    E("    s_load_dwordx2 s[4:5], s[0:1], 32      ; wo")
    E("    s_load_dwordx2 s[8:9], s[0:1], 96      ; ws")
    E("    s_lshr_b32 s10, s2, 3                  ; h")
    E("    s_and_b32 s11, s2, 7                   ; cg")
    E("    v_lshrrev_b32 v1, 3, v0                ; rs")
    E("    v_and_b32 v2, 7, v0                    ; ch")
    E("    v_lshlrev_b32 v3, 10, v1")
    E("    v_lshl_add_u32 v3, v2, 4, v3")
    E("    s_lshl_b32 s12, s10, 17                ; h*128*1024")
    E("    s_lshl_b32 s13, s11, 7                 ; cg*128")
    E("    s_add_u32 s12, s12, s13")
    for p in range(4):
        E(f"    s_add_u32 s{40+p}, s12, {p*32768}")
    E("    s_waitcnt lgkmcnt(0)")
    srd(16, 4, 4096*512*2)
    srd(24, 8, 536870912)
    for p in range(4):
        E(f"    buffer_load_dwordx4 v[{16+4*p}:{19+4*p}], v3, s[16:19], s{40+p} offen")
    E("    v_and_b32 v4, 31, v0")
    E("    v_lshlrev_b32 v4, 3, v4")
    E("    s_lshl_b32 s12, s10, 8                 ; h*32*8")
    E(f"    s_add_u32 s12, s12, {ML_OFF}")
    E("    buffer_load_dwordx2 v[6:7], v4, s[24:27], s12 offen")
    E("    v_and_b32 v5, 127, v0")
    E("    v_lshlrev_b32 v5, 2, v5")
    E("    s_lshl_b32 s12, s10, 14                ; h*32*512")
    E(f"    s_add_u32 s12, s12, {PART_OFF}")
    for k in range(4):
        E(f"    s_add_u32 s{44+k}, s12, {k*4096}")
    for i in range(32):
        E(f"    buffer_load_dword v{64+i}, v5, s[24:27], s{44+(i>>3)} offen offset:{(i&7)*512}")
    E(f"    s_mov_b32 s31, {LOG2E}")
    E("    s_waitcnt vmcnt(32)")
    E("    v_mov_b32 v8, v6")
    wave_reduce("v_max_f32", 8, 9, full=False)
    E("    v_sub_f32 v9, v6, v8")
    E("    v_mul_f32 v9, s31, v9")
    E("    v_exp_f32 v9, v9                       ; w_i")
    E("    s_nop 0")
    E("    v_mul_f32 v10, v9, v7                  ; w_i*l_i")
    wave_reduce("v_add_f32", 10, 11, full=False)
    E("    v_mov_b32 v12, 0")
    E("    s_waitcnt vmcnt(0)")
    for i in range(32):
        E(f"    v_readlane_b32 s{48+i}, v9, {i}")
    E("    s_nop 1")
    for i in range(32):
        E(f"    v_fmac_f32 v12, s{48+i}, v{64+i}")
    E("    v_rcp_f32 v11, v10")
    E("    s_nop 0")
    E("    v_mul_f32 v13, v12, v11")
    E("    v_fma_f32 v14, -v13, v10, v12")
    E("    v_fma_f32 v12, v14, v11, v13")
    rnd_bf16(12)
    E("    v_cmp_gt_u32 vcc, 128, v0")
    E("    s_and_saveexec_b64 s[34:35], vcc")
    E("    ds_write_b32 v5, v12")
    E("    s_mov_b64 exec, s[34:35]")
    E("    s_waitcnt lgkmcnt(0)")
    E("    s_barrier")
    E("    v_lshlrev_b32 v4, 2, v1")
    for p in range(4):
        E(f"    ds_read_b32 v{8+p}, v4 offset:{p*128}")
    for i in range(8):
        E(f"    v_mov_b32 v{40+i}, 0")
    E("    s_waitcnt lgkmcnt(0)")
    for p in range(4):
        for d in range(4):
            E(f"    v_lshlrev_b32 v32, 16, v{16+4*p+d}")
            E(f"    v_and_b32 v33, 0xffff0000, v{16+4*p+d}")
            E(f"    v_fmac_f32 v{40+2*d}, v{8+p}, v32")
            E(f"    v_fmac_f32 v{41+2*d}, v{8+p}, v33")
    for i in range(8):
        v = 40+i
        E("    s_nop 1")
        E(f"    v_add_f32_dpp v{v}, v{v}, v{v} row_ror:8 row_mask:0xf bank_mask:0xf")
        E(f"    v_mov_b32 v32, v{v}")
        E("    s_nop 1")
        E(f"    v_permlane16_swap_b32 v{v}, v32")
        E("    s_nop 1")
        E(f"    v_add_f32 v{v}, v{v}, v32")
        E(f"    v_mov_b32 v32, v{v}")
        E("    s_nop 1")
        E(f"    v_permlane32_swap_b32 v{v}, v32")
        E("    s_nop 1")
        E(f"    v_add_f32 v{v}, v{v}, v32")
    E("    v_lshrrev_b32 v6, 6, v0")
    E("    v_lshlrev_b32 v6, 8, v6")
    E("    v_lshl_add_u32 v6, v2, 5, v6")
    E("    v_and_b32 v7, 63, v0")
    E("    v_cmp_gt_u32 vcc, 8, v7")
    E("    s_and_saveexec_b64 s[34:35], vcc")
    E("    ds_write_b128 v6, v[40:43] offset:1024")
    E("    ds_write_b128 v6, v[44:47] offset:1040")
    E("    s_mov_b64 exec, s[34:35]")
    E("    s_waitcnt lgkmcnt(0)")
    E("    s_barrier")
    E("    v_cmp_gt_u32 vcc, 64, v0")
    E("    s_and_saveexec_b64 s[34:35], vcc")
    E("    s_cbranch_execz k3_end")
    E("    v_lshlrev_b32 v6, 2, v0")
    E("    ds_read_b32 v8, v6 offset:1024")
    E("    ds_read_b32 v9, v6 offset:1280")
    E("    ds_read_b32 v10, v6 offset:1536")
    E("    ds_read_b32 v11, v6 offset:1792")
    E("    s_waitcnt lgkmcnt(0)")
    E("    v_add_f32 v8, v8, v9")
    E("    v_add_f32 v10, v10, v11")
    E("    v_add_f32 v8, v8, v10")
    E("    s_lshl_b32 s12, s10, 11                ; h*2048")
    E("    s_lshl_b32 s13, s11, 8                 ; cg*256")
    E("    s_add_u32 s12, s12, s13")
    E(f"    s_add_u32 s12, s12, {WOP_OFF}")
    E("    buffer_store_dword v8, v6, s[24:27], s12 offen")
    E("k3_end:")
    E("    s_endpgm")
    kd(name, 96)

def k4():
    name = "k4_ffn_kernel"
    kstart(name)
    E("    s_cmp_ge_u32 s2, 112")
    E("    s_cbranch_scc1 k4_end")
    E("    s_load_dwordx2 s[4:5], s[0:1], 0       ; x")
    E("    s_load_dwordx2 s[6:7], s[0:1], 48      ; w1")
    E("    s_load_dwordx2 s[8:9], s[0:1], 56      ; b1")
    E("    s_load_dwordx2 s[10:11], s[0:1], 64    ; w2")
    E("    s_load_dwordx2 s[12:13], s[0:1], 96    ; ws")
    E("    v_lshrrev_b32 v1, 1, v0                ; rs (0..127)")
    E("    v_and_b32 v2, 1, v0                    ; ch")
    E("    s_mov_b32 s14, 14336                   ; 4*3584")
    E("    v_mul_lo_u32 v3, v1, s14")
    E("    v_lshl_add_u32 v3, v2, 4, v3")
    E("    s_lshl_b32 s15, s2, 5")
    E("    v_add_u32 v3, s15, v3")
    E("    v_lshrrev_b32 v4, 6, v0")
    E("    v_lshlrev_b32 v4, 10, v4")
    E("    v_and_b32 v5, 63, v0")
    E("    v_lshl_add_u32 v4, v5, 4, v4")
    E("    s_lshl_b32 s15, s2, 14")
    E("    v_add_u32 v4, s15, v4")
    E("    v_lshlrev_b32 v6, 3, v0                ; t*8 (2 cols f32)")
    E("    v_lshlrev_b32 v7, 2, v0")
    E("    s_waitcnt lgkmcnt(0)")
    srd(16, 4, 1024)
    srd(20, 6, 512*1792*2)
    srd(24, 8, 1792*2)
    srd(28, 10, 1792*512*2)
    srd(36, 12, 536870912)
    for p in range(4):
        E(f"    buffer_load_dwordx4 v[{16+4*p}:{19+4*p}], v3, s[20:23], 0 offen offset:{p*3584}" if p*3584 < 4096 else
          f"    s_mov_b32 s33, {p*3584}\n    buffer_load_dwordx4 v[{16+4*p}:{19+4*p}], v3, s[20:23], s33 offen")
    for p in range(4):
        E(f"    s_mov_b32 s33, {p*4096}")
        E(f"    buffer_load_dwordx4 v[{32+4*p}:{35+4*p}], v4, s[28:31], s33 offen")
    E("    buffer_load_dword v8, v7, s[16:19], 0 offen          ; x pair")
    for i in range(32):
        E(f"    s_mov_b32 s33, {WOP_OFF + i*2048}")
        E(f"    buffer_load_dwordx2 v[{64+2*i}:{65+2*i}], v6, s[36:39], s33 offen")
    E("    s_mov_b32 s32, 0x3b000000              ; 1/512")
    E("    s_waitcnt vmcnt(0)")
    E("    v_add_f32 v10, v64, v66")
    E("    v_add_f32 v11, v65, v67")
    for i in range(2, 32):
        E(f"    v_add_f32 v10, v10, v{64+2*i}")
        E(f"    v_add_f32 v11, v11, v{65+2*i}")
    rnd_bf16(10); rnd_bf16(11)
    E("    v_lshlrev_b32 v12, 16, v8")
    E("    v_and_b32 v13, 0xffff0000, v8")
    E("    v_add_f32 v10, v10, v12")
    E("    v_add_f32 v11, v11, v13")
    rnd_bf16(10); rnd_bf16(11)
    E("    s_cmp_lg_u32 s2, 0")
    E("    s_cbranch_scc1 k4_noh")
    E(f"    s_mov_b32 s33, {H_OFF}")
    E("    buffer_store_dwordx2 v[10:11], v6, s[36:39], s33 offen")
    E("k4_noh:")
    E("    v_add_f32 v12, v10, v11")
    wave_reduce("v_add_f32", 12, 13)
    E("    v_lshrrev_b32 v14, 6, v0")
    E("    v_lshlrev_b32 v14, 2, v14              ; wave*4")
    E("    ds_write_b32 v14, v12 offset:4096")
    E("    s_waitcnt lgkmcnt(0)")
    E("    s_barrier")
    E("    v_mov_b32 v15, 0")
    E("    ds_read_b128 v[48:51], v15 offset:4096")
    E("    s_waitcnt lgkmcnt(0)")
    E("    v_add_f32 v48, v48, v49")
    E("    v_add_f32 v50, v50, v51")
    E("    v_add_f32 v12, v48, v50")
    E("    v_mul_f32 v12, s32, v12                ; mean f32")
    E("    v_sub_f32 v13, v10, v12")
    E("    v_mul_f32 v52, v13, v13")
    E("    v_sub_f32 v13, v11, v12")
    E("    v_fmac_f32 v52, v13, v13")
    wave_reduce("v_add_f32", 52, 13)
    E("    ds_write_b32 v14, v52 offset:4112")
    E("    s_waitcnt lgkmcnt(0)")
    E("    s_barrier")
    E("    ds_read_b128 v[48:51], v15 offset:4112")
    E("    s_waitcnt lgkmcnt(0)")
    E("    v_add_f32 v48, v48, v49")
    E("    v_add_f32 v50, v50, v51")
    E("    v_add_f32 v52, v48, v50")
    E("    v_mul_f32 v52, s32, v52                ; var")
    rnd_bf16(52)
    E("    v_add_f32 v52, 0x3727c5ac, v52")
    rnd_bf16(52)
    E("    v_sqrt_f32 v52, v52")
    E("    s_nop 0")
    rnd_bf16(52)
    rnd_bf16(12)
    E("    v_sub_f32 v10, v10, v12")
    E("    v_sub_f32 v11, v11, v12")
    rnd_bf16(10); rnd_bf16(11)
    div_rnd(10, 52, 53, 54, 55)
    div_rnd(11, 52, 53, 54, 55)
    E("    ds_write_b64 v6, v[10:11]              ; hn f32 [512]")
    E("    s_waitcnt lgkmcnt(0)")
    E("    s_barrier")
    E("    v_lshlrev_b32 v12, 4, v1               ; rs*16")
    E("    ds_read_b128 v[48:51], v12")
    for i in range(8):
        E(f"    v_mov_b32 v{56+i}, 0")
    E("    s_waitcnt lgkmcnt(0)")
    for p in range(4):
        for d in range(4):
            E(f"    v_lshlrev_b32 v52, 16, v{16+4*p+d}")
            E(f"    v_and_b32 v53, 0xffff0000, v{16+4*p+d}")
            E(f"    v_fmac_f32 v{56+2*d}, v{48+p}, v52")
            E(f"    v_fmac_f32 v{57+2*d}, v{48+p}, v53")
    for i in range(8):
        v = 56+i
        E("    s_nop 1")
        E(f"    v_add_f32_dpp v{v}, v{v}, v{v} quad_perm:[2,3,0,1] row_mask:0xf bank_mask:0xf")
        E("    s_nop 1")
        E(f"    v_add_f32_dpp v{v}, v{v}, v{v} row_ror:4 row_mask:0xf bank_mask:0xf")
        E("    s_nop 1")
        E(f"    v_add_f32_dpp v{v}, v{v}, v{v} row_ror:8 row_mask:0xf bank_mask:0xf")
        E(f"    v_mov_b32 v52, v{v}")
        E("    s_nop 1")
        E(f"    v_permlane16_swap_b32 v{v}, v52")
        E("    s_nop 1")
        E(f"    v_add_f32 v{v}, v{v}, v52")
        E(f"    v_mov_b32 v52, v{v}")
        E("    s_nop 1")
        E(f"    v_permlane32_swap_b32 v{v}, v52")
        E("    s_nop 1")
        E(f"    v_add_f32 v{v}, v{v}, v52")
    E("    v_lshrrev_b32 v12, 6, v0")
    E("    v_lshlrev_b32 v12, 6, v12")
    E("    v_lshl_add_u32 v12, v2, 5, v12")
    E("    v_and_b32 v13, 63, v0")
    E("    v_cmp_gt_u32 vcc, 2, v13")
    E("    s_and_saveexec_b64 s[34:35], vcc")
    E("    ds_write_b128 v12, v[56:59] offset:4160")
    E("    ds_write_b128 v12, v[60:63] offset:4176")
    E("    s_mov_b64 exec, s[34:35]")
    E("    v_and_b32 v13, 15, v0")
    E("    v_lshlrev_b32 v14, 1, v13")
    E("    s_lshl_b32 s15, s2, 5")
    E("    buffer_load_ushort v15, v14, s[24:27], s15 offen")
    E("    s_waitcnt lgkmcnt(0)")
    E("    s_barrier")
    E("    v_lshlrev_b32 v14, 2, v13")
    E("    ds_read_b32 v48, v14 offset:4160")
    E("    ds_read_b32 v49, v14 offset:4224")
    E("    ds_read_b32 v50, v14 offset:4288")
    E("    ds_read_b32 v51, v14 offset:4352")
    E("    s_waitcnt lgkmcnt(0) vmcnt(0)")
    E("    v_add_f32 v48, v48, v49")
    E("    v_add_f32 v50, v50, v51")
    E("    v_add_f32 v48, v48, v50")
    rnd_bf16(48)
    E("    v_lshlrev_b32 v15, 16, v15")
    E("    v_add_f32 v48, v48, v15")
    rnd_bf16(48)
    E("    v_max_f32 v48, 0, v48")
    E("    v_mul_f32 v48, v48, v48")
    rnd_bf16(48)
    E("    v_readfirstlane_b32 s33, v0")
    E("    s_nop 3")
    E("    s_lshr_b32 s33, s33, 6                 ; wave")
    for p in range(4):
        E(f"    s_add_u32 s40, s33, {4*p}")
        E("    s_nop 3")
        E(f"    v_readlane_b32 s{44+p}, v48, s40")
    for i in range(8):
        E(f"    v_mov_b32 v{56+i}, 0")
    E("    s_nop 1")
    for p in range(4):
        for d in range(4):
            E(f"    v_lshlrev_b32 v52, 16, v{32+4*p+d}")
            E(f"    v_and_b32 v53, 0xffff0000, v{32+4*p+d}")
            E(f"    v_fmac_f32 v{56+2*d}, s{44+p}, v52")
            E(f"    v_fmac_f32 v{57+2*d}, s{44+p}, v53")
    E("    v_lshrrev_b32 v12, 6, v0")
    E("    v_lshlrev_b32 v12, 11, v12")
    E("    v_lshl_add_u32 v12, v5, 5, v12")
    E("    ds_write_b128 v12, v[56:59] offset:8192")
    E("    ds_write_b128 v12, v[60:63] offset:8208")
    E("    s_waitcnt lgkmcnt(0)")
    E("    s_barrier")
    E("    ds_read_b64 v[48:49], v6 offset:8192")
    E("    ds_read_b64 v[50:51], v6 offset:10240")
    E("    ds_read_b64 v[52:53], v6 offset:12288")
    E("    ds_read_b64 v[54:55], v6 offset:14336")
    E("    s_waitcnt lgkmcnt(0)")
    E("    v_add_f32 v48, v48, v50")
    E("    v_add_f32 v49, v49, v51")
    E("    v_add_f32 v52, v52, v54")
    E("    v_add_f32 v53, v53, v55")
    E("    v_add_f32 v48, v48, v52")
    E("    v_add_f32 v49, v49, v53")
    E("    s_lshl_b32 s33, s2, 11")
    E(f"    s_add_u32 s33, s33, {FFP_OFF}")
    E("    buffer_store_dwordx2 v[48:49], v6, s[36:39], s33 offen")
    E("k4_end:")
    E("    s_endpgm")
    kd(name, 128)

def k5():
    name = "k5_final_kernel"
    kstart(name)
    E("    s_cmp_ge_u32 s2, 8")
    E("    s_cbranch_scc1 k5_end")
    E("    s_load_dwordx2 s[4:5], s[0:1], 72      ; b2")
    E("    s_load_dwordx2 s[6:7], s[0:1], 80      ; out")
    E("    s_load_dwordx2 s[8:9], s[0:1], 96      ; ws")
    E("    v_lshrrev_b32 v1, 6, v0                ; q")
    E("    v_and_b32 v2, 63, v0")
    E("    s_lshl_b32 s3, s2, 6")
    E("    v_add_u32 v3, s3, v2                   ; col")
    E("    v_lshlrev_b32 v4, 2, v3                ; col*4")
    E("    v_lshl_add_u32 v5, v1, 11, v4          ; + q*2048")
    E("    s_waitcnt lgkmcnt(0)")
    srd(16, 4, 1024)
    srd(20, 6, 1024)
    srd(24, 8, 536870912)
    for i in range(28):
        E(f"    s_mov_b32 s33, {FFP_OFF + i*8192}")
        E(f"    buffer_load_dword v{16+i}, v5, s[24:27], s33 offen")
    E(f"    s_mov_b32 s33, {H_OFF}")
    E("    buffer_load_dword v8, v4, s[24:27], s33 offen")
    E("    v_lshlrev_b32 v6, 1, v3")
    E("    buffer_load_ushort v9, v6, s[16:19], 0 offen")
    E("    s_waitcnt vmcnt(0)")
    for i in range(1, 28):
        E(f"    v_add_f32 v16, v16, v{16+i}")
    E("    v_lshlrev_b32 v7, 2, v0")
    E("    ds_write_b32 v7, v16")
    E("    s_waitcnt lgkmcnt(0)")
    E("    s_barrier")
    E("    v_cmp_gt_u32 vcc, 64, v0")
    E("    s_and_saveexec_b64 s[34:35], vcc")
    E("    s_cbranch_execz k5_end")
    E("    ds_read_b32 v10, v7")
    E("    ds_read_b32 v11, v7 offset:256")
    E("    ds_read_b32 v12, v7 offset:512")
    E("    ds_read_b32 v13, v7 offset:768")
    E("    s_waitcnt lgkmcnt(0)")
    E("    v_add_f32 v10, v10, v11")
    E("    v_add_f32 v12, v12, v13")
    E("    v_add_f32 v10, v10, v12")
    rnd_bf16(10)
    E("    v_lshlrev_b32 v9, 16, v9")
    E("    v_add_f32 v10, v10, v9")
    rnd_bf16(10)
    E("    v_add_f32 v10, v10, v8")
    E("    v_cvt_pk_bf16_f32 v10, v10, v10")
    E("    buffer_store_short v10, v6, s[20:23], 0 offen")
    E("k5_end:")
    E("    s_endpgm")
    kd(name, 48)

E(HEADER.rstrip())
E("; @launch kernel=k1_qproj_kernel grid=(128,1,1) block=(256,1,1) lds=512")
E("; @launch kernel=k2_attn_kernel grid=(256,1,1) block=(512,1,1) lds=16640")
E("; @launch kernel=k3_wo_kernel grid=(256,1,1) block=(256,1,1) lds=2048")
E("; @launch kernel=k4_ffn_kernel grid=(112,1,1) block=(256,1,1) lds=16384")
E("; @launch kernel=k5_final_kernel grid=(8,1,1) block=(256,1,1) lds=1024")
E('.amdgcn_target "amdgcn-amd-amdhsa--gfx950"')
E(".text")
k1(); k2(); k3(); k4(); k5()
open("cdna_kernels/%s.s" % NAME, "w").write("\n".join(out) + "\n")
print("written", len(out), "lines")
```

```python
import sys, os
NAME = "sequential_preLN__gqa_block_cached__dense_activation_squared_relu__decode"
HEADER = open("cdna_kernels/%s.s.ref" % NAME).read().split("; Override launch geometry")[0]

Q_OFF = 0
PART_OFF = 65536
ML_OFF = PART_OFF + 32*32*512
WOG_OFF = ML_OFF + 32*32*8
FFG_OFF = WOG_OFF + 8*512*8
TAGZ_BYTES = 8*512*8 + 56*512*8
LOG2E = 0x3fb8aa3b
SCALE = 0x3db504f3
POLL_LIMIT = 400000
TS = os.environ.get("TS") == "1"
TS_OFF = 1 << 20

out = []
def E(s=""):
    out.append(s)

def srd(dst, base, nbytes):
    E(f"    s_mov_b32 s{dst}, s{base}")
    E(f"    s_and_b32 s{dst+1}, s{base+1}, 0xffff")
    E(f"    s_mov_b32 s{dst+2}, {nbytes}")
    E(f"    s_mov_b32 s{dst+3}, 0x00020000")

def swap_red(op, v, tmp, which):
    E(f"    v_mov_b32 v{tmp}, v{v}")
    E("    s_nop 1")
    E(f"    v_permlane{which}_swap_b32 v{v}, v{tmp}")
    E("    s_nop 1")
    E(f"    {op} v{v}, v{v}, v{tmp}")

def wave_reduce(op, v, tmp, full=True):
    for dpp in ("quad_perm:[1,0,3,2]", "quad_perm:[2,3,0,1]", "row_half_mirror", "row_mirror"):
        E("    s_nop 1")
        E(f"    {op}_dpp v{v}, v{v}, v{v} {dpp} row_mask:0xf bank_mask:0xf")
    swap_red(op, v, tmp, 16)
    if full:
        swap_red(op, v, tmp, 32)

def stride_reduce(v, tmp, stride):
    steps = {2: ["quad_perm:[2,3,0,1]", "row_ror:4", "row_ror:8"], 4: ["row_ror:4", "row_ror:8"], 8: ["row_ror:8"]}[stride]
    for dpp in steps:
        E("    s_nop 1")
        E(f"    v_add_f32_dpp v{v}, v{v}, v{v} {dpp} row_mask:0xf bank_mask:0xf")
    swap_red("v_add_f32", v, tmp, 16)
    swap_red("v_add_f32", v, tmp, 32)

def rnd_bf16(v):
    E(f"    v_cvt_pk_bf16_f32 v{v}, v{v}, v{v}")
    E(f"    v_lshlrev_b32 v{v}, 16, v{v}")

def div_rnd(vnum, vden, vt0, vt1, vt2):
    E(f"    v_rcp_f32 v{vt0}, v{vden}")
    E("    s_nop 0")
    E(f"    v_mul_f32 v{vt1}, v{vnum}, v{vt0}")
    E(f"    v_fma_f32 v{vt2}, -v{vt1}, v{vden}, v{vnum}")
    E(f"    v_fma_f32 v{vnum}, v{vt2}, v{vt0}, v{vt1}")
    rnd_bf16(vnum)

def gemv_unpack_fma(wreg, acc, xs, t0, t1):
    for d in range(4):
        E(f"    v_lshlrev_b32 v{t0}, 16, v{wreg+d}")
        E(f"    v_and_b32 v{t1}, 0xffff0000, v{wreg+d}")
        E(f"    v_fmac_f32 v{acc+2*d}, {xs}, v{t0}")
        E(f"    v_fmac_f32 v{acc+2*d+1}, {xs}, v{t1}")

def kd(name, vgpr, sgpr=102):
    acc = (vgpr + 3)//4*4
    E('.section .rodata,"a"')
    E(".p2align 6")
    E(f".amdhsa_kernel {name}")
    E(f"  .amdhsa_next_free_vgpr {vgpr}")
    E(f"  .amdhsa_next_free_sgpr {sgpr}")
    E(f"  .amdhsa_accum_offset {acc}")
    E("  .amdhsa_group_segment_fixed_size 0")
    E("  .amdhsa_kernarg_size 104")
    E("  .amdhsa_user_sgpr_count 2")
    E("  .amdhsa_user_sgpr_kernarg_segment_ptr 1")
    E("  .amdhsa_system_sgpr_workgroup_id_x 1")
    E(".end_amdhsa_kernel")
    E(".text")

def kstart(name):
    E(f".globl {name}")
    E(".p2align 8")
    E(f".type {name},@function")
    E(f"{name}:")

def sum8(base, dst):
    E(f"    v_add_f32 v{base}, v{base}, v{base+1}")
    E(f"    v_add_f32 v{base+2}, v{base+2}, v{base+3}")
    E(f"    v_add_f32 v{base+4}, v{base+4}, v{base+5}")
    E(f"    v_add_f32 v{base+6}, v{base+6}, v{base+7}")
    E(f"    v_add_f32 v{base}, v{base}, v{base+2}")
    E(f"    v_add_f32 v{base+4}, v{base+4}, v{base+6}")
    E(f"    v_add_f32 v{dst}, v{base}, v{base+4}")

_l = [0]
def stamp(k):
    if not TS: return
    _l[0] += 1
    E(f"    s_cmp_lg_u32 s3, 0")
    E(f"    s_cbranch_scc1 ts_skip{_l[0]}")
    E("    s_memrealtime s[54:55]")
    E("    s_waitcnt lgkmcnt(0)")
    E("    v_mov_b32 v120, s54")
    E("    v_mov_b32 v121, s55")
    E("    s_lshl_b32 s54, s2, 7")
    E(f"    s_add_u32 s54, s54, {TS_OFF + k*8}")
    E("    v_mov_b32 v122, s54")
    E("    s_mov_b64 s[52:53], exec")
    E("    s_mov_b64 exec, 1")
    E("    global_store_dwordx2 v122, v[120:121], s[88:89]")
    E("    s_mov_b64 exec, s[52:53]")
    E("    s_waitcnt vmcnt(0)")
    E(f"ts_skip{_l[0]}:")

g1 = open("gen1.py").read()
a = g1.index("# ---------------------------------------------------------------- LN helper pieces")
b = g1.index("# =====================================================================================\n# K3: combine + wo partial GEMV")
src = g1[a:b].replace("def div_rnd(vnum, vden, vt0, vt1, vt2):", "def div_rnd1(vnum, vden, vt0, vt1, vt2):").replace("div_rnd(16+i, 27, 28, 29, 30)", "div_rnd1(16+i, 27, 28, 29, 30)")
src = src.replace('''    E("    buffer_load_dwordx4 v[8:11], v4, s[12:15], 0 offen     ; x for stats")''',
'''    E("    v_mov_b32 v6, 0")
    E("    v_mov_b32 v7, 0")
    E("    v_lshlrev_b32 v28, 3, v0")
    E("    s_lshl_b32 s33, s2, 11                 ; wg*2048")
    E(f"    s_add_u32 s33, s33, {WOG_OFF}")
    E("    buffer_store_dwordx2 v[6:7], v28, s[20:23], s33 offen   ; zero hand-off tags")
    E("    buffer_load_dwordx4 v[8:11], v4, s[12:15], 0 offen     ; x for stats")''')
src = src.replace('E("    s_waitcnt vmcnt(9)")', 'E("    s_waitcnt vmcnt(9)")')
exec(src)

def poll_granules(n, vaddr, soffs, vdst, lbl):
    E("    s_mov_b32 s50, 0")
    E(f"{lbl}_loop:")
    for i in range(n):
        E(f"    buffer_load_dwordx2 v[{vdst+2*i}:{vdst+2*i+1}], v{vaddr}, s[24:27], s{soffs[i]} offen sc1")
    E("    s_waitcnt vmcnt(0)")
    E(f"    v_and_b32 v9, v{vdst+1}, v{vdst+3}")
    for i in range(2, n):
        E(f"    v_and_b32 v9, v9, v{vdst+2*i+1}")
    E("    v_cmp_eq_u32 vcc, 1, v9")
    E("    s_add_u32 s50, s50, 1")
    E("    s_nop 1")
    E("    s_cmp_eq_u64 vcc, exec")
    E(f"    s_cbranch_scc1 {lbl}_done")
    E(f"    s_cmp_lt_u32 s50, {POLL_LIMIT}")
    E(f"    s_cbranch_scc1 {lbl}_loop")
    E(f"{lbl}_done:")

def k3():
    name = "k3_tail_kernel"
    kstart(name)
    E("    s_cmp_ge_u32 s2, 128")
    E("    s_cbranch_scc1 k3_end")
    E("    s_load_dwordx16 s[64:79], s[0:1], 0")
    E("    s_load_dwordx8 s[80:87], s[0:1], 64")
    E("    s_load_dwordx2 s[88:89], s[0:1], 96    ; ws")
    E("    v_readfirstlane_b32 s3, v0")
    E("    s_nop 3")
    E("    s_lshr_b32 s3, s3, 6                   ; wave")
    E(f"    s_mov_b32 s31, {LOG2E}")
    E("    s_mov_b32 s33, 0x3b000000")
    E("    v_lshrrev_b32 v3, 6, v0                ; wave")
    E("    s_waitcnt lgkmcnt(0)")
    srd(24, 88, 536870912)
    stamp(0)
    E("    s_cmp_lt_u32 s2, 64")
    E("    s_cbranch_scc1 r_wo")
    E("    s_cmp_lt_u32 s2, 120")
    E("    s_cbranch_scc1 r_ffn")
    E("    s_branch r_fin")
    E("r_wo:")
    E("    s_lshr_b32 s14, s2, 3                  ; kvh")
    E("    s_and_b32 s15, s2, 7                   ; cg")
    E("    v_lshrrev_b32 v1, 7, v0                ; head")
    E("    v_and_b32 v2, 127, v0                  ; d")
    E("    s_lshl_b32 s12, s14, 2")
    E("    v_add_u32 v6, s12, v1")
    E("    v_and_b32 v7, 31, v0")
    E("    v_lshlrev_b32 v8, 8, v6")
    E("    v_lshl_add_u32 v8, v7, 3, v8")
    E(f"    s_mov_b32 s13, {ML_OFF}")
    E("    buffer_load_dwordx2 v[10:11], v8, s[24:27], s13 offen")
    E("    v_lshlrev_b32 v8, 14, v6")
    E("    v_lshl_add_u32 v8, v2, 2, v8")
    for k in range(4):
        E(f"    s_mov_b32 s{56+k}, {PART_OFF + k*4096}")
    for i in range(32):
        E(f"    buffer_load_dword v{64+i}, v8, s[24:27], s{56+(i>>3)} offen offset:{(i&7)*512}")
    E("    s_lshl_b32 s12, s14, 19")
    E("    s_lshl_b32 s13, s15, 7")
    E("    s_add_u32 s12, s12, s13")
    srd(36, 72, 4096*512*2)
    E("    v_lshrrev_b32 v4, 3, v0                ; rs")
    E("    v_and_b32 v5, 7, v0                    ; ch")
    E("    v_lshlrev_b32 v9, 13, v4")
    E("    v_lshl_add_u32 v9, v5, 4, v9")
    E("    s_add_u32 s13, s12, 4096")
    for p in range(8):
        E(f"    buffer_load_dwordx4 v[{32+4*p}:{35+4*p}], v9, s[36:39], s{12 if p<4 else 13} offen offset:{(p&3)*1024}")
    E("    s_waitcnt vmcnt(40)")
    E("    v_mov_b32 v12, v10")
    wave_reduce("v_max_f32", 12, 13, full=False)
    E("    v_sub_f32 v13, v10, v12")
    E("    v_mul_f32 v13, s31, v13")
    E("    v_exp_f32 v13, v13")
    E("    s_nop 0")
    E("    v_mul_f32 v14, v13, v11")
    wave_reduce("v_add_f32", 14, 15, full=False)
    E("    v_mov_b32 v16, 0")
    E("    s_waitcnt vmcnt(8)")
    for q4 in range(4):
        for k in range(8):
            E(f"    v_readlane_b32 s{40+k}, v13, {q4*8+k}")
        E("    s_nop 1")
        for k in range(8):
            E(f"    v_fmac_f32 v16, s{40+k}, v{64+q4*8+k}")
    E("    v_rcp_f32 v15, v14")
    E("    s_nop 0")
    E("    v_mul_f32 v17, v16, v15")
    E("    v_fma_f32 v18, -v17, v14, v16")
    E("    v_fma_f32 v16, v18, v15, v17")
    rnd_bf16(16)
    E("    v_lshlrev_b32 v8, 2, v0")
    E("    ds_write_b32 v8, v16")
    E("    s_waitcnt lgkmcnt(0)")
    E("    s_barrier")
    E("    v_lshlrev_b32 v8, 5, v4")
    E("    ds_read_b128 v[16:19], v8")
    E("    ds_read_b128 v[20:23], v8 offset:16")
    for i in range(8):
        E(f"    v_mov_b32 v{64+i}, 0")
    E("    s_waitcnt lgkmcnt(0) vmcnt(0)")
    for p in range(8):
        gemv_unpack_fma(32+4*p, 64, f"v{16+p}", 28, 29)
    for i in range(8):
        stride_reduce(64+i, 28, 8)
    E("    v_lshlrev_b32 v6, 8, v3")
    E("    v_lshl_add_u32 v6, v5, 5, v6")
    E("    v_and_b32 v8, 63, v0")
    E("    v_cmp_gt_u32 vcc, 8, v8")
    E("    s_and_saveexec_b64 s[52:53], vcc")
    E("    ds_write_b128 v6, v[64:67] offset:4096")
    E("    ds_write_b128 v6, v[68:71] offset:4112")
    E("    s_mov_b64 exec, s[52:53]")
    E("    s_waitcnt lgkmcnt(0)")
    E("    s_barrier")
    E("    s_cmp_lg_u32 s3, 0")
    E("    s_cbranch_scc1 k3_end")
    E("    v_lshlrev_b32 v6, 2, v0")
    for w in range(8):
        E(f"    ds_read_b32 v{8+w}, v6 offset:{4096 + w*256}")
    E("    s_waitcnt lgkmcnt(0)")
    sum8(8, 8)
    E("    v_mov_b32 v9, 1")
    E("    v_lshlrev_b32 v6, 3, v0")
    E("    s_lshl_b32 s12, s14, 12                ; kvh*512*8")
    E("    s_lshl_b32 s13, s15, 9                 ; cg*64*8")
    E("    s_add_u32 s12, s12, s13")
    E(f"    s_add_u32 s12, s12, {WOG_OFF}")
    E("    buffer_store_dwordx2 v[8:9], v6, s[24:27], s12 offen sc1")
    stamp(1)
    E("    s_branch k3_end")
    E("r_ffn:")
    E("    s_sub_u32 s14, s2, 64                  ; fi")
    srd(36, 76, 512*1792*2)
    srd(92, 80, 1792*512*2)
    E("    v_lshrrev_b32 v4, 2, v0                ; rs 0..127")
    E("    v_and_b32 v5, 3, v0                    ; ch")
    E("    s_mov_b32 s12, 14336")
    E("    v_mul_lo_u32 v6, v4, s12")
    E("    v_lshl_add_u32 v6, v5, 4, v6")
    E("    s_lshl_b32 s12, s14, 6")
    E("    buffer_load_dwordx4 v[32:35], v6, s[36:39], s12 offen")
    E("    buffer_load_dwordx4 v[36:39], v6, s[36:39], s12 offen offset:3584")
    E("    s_add_u32 s13, s12, 7168")
    E("    buffer_load_dwordx4 v[40:43], v6, s[36:39], s13 offen")
    E("    buffer_load_dwordx4 v[44:47], v6, s[36:39], s13 offen offset:3584")
    E("    v_lshlrev_b32 v6, 10, v3")
    E("    v_and_b32 v7, 63, v0")
    E("    v_lshl_add_u32 v6, v7, 4, v6")
    E("    s_lshl_b32 s12, s14, 15")
    for p in range(4):
        E(f"    s_add_u32 s13, s12, {p*8192}")
        E(f"    buffer_load_dwordx4 v[{48+4*p}:{51+4*p}], v6, s[92:95], s13 offen")
    srd(36, 64, 1024)
    srd(92, 78, 1792*2)
    E("    v_lshlrev_b32 v6, 1, v0")
    E("    buffer_load_ushort v12, v6, s[36:39], 0 offen")
    E("    v_and_b32 v7, 31, v0")
    E("    v_lshlrev_b32 v7, 1, v7")
    E("    s_lshl_b32 s12, s14, 6")
    E("    buffer_load_ushort v15, v7, s[92:95], s12 offen")
    E("    v_lshlrev_b32 v8, 3, v0                ; t*8")
    for i in range(8):
        E(f"    s_mov_b32 s{56+i}, {WOG_OFF + i*4096}")
    poll_granules(8, 8, list(range(56, 64)), 64, "pf")
    stamp(2)
    for i in range(8):
        E(f"    v_mov_b32 v{16+i}, v{64+2*i}")
    sum8(16, 10)
    rnd_bf16(10)
    E("    v_lshlrev_b32 v12, 16, v12")
    E("    v_add_f32 v10, v10, v12")
    rnd_bf16(10)
    E("    v_mov_b32 v11, v10")
    wave_reduce("v_add_f32", 11, 13)
    E("    v_lshlrev_b32 v14, 2, v3")
    E("    ds_write_b32 v14, v11 offset:4096")
    E("    s_waitcnt lgkmcnt(0)")
    E("    s_barrier")
    E("    v_mov_b32 v13, 0")
    E("    ds_read_b128 v[16:19], v13 offset:4096")
    E("    ds_read_b128 v[20:23], v13 offset:4112")
    E("    s_waitcnt lgkmcnt(0)")
    sum8(16, 11)
    E("    v_mul_f32 v11, s33, v11")
    E("    v_sub_f32 v13, v10, v11")
    E("    v_mul_f32 v24, v13, v13")
    wave_reduce("v_add_f32", 24, 13)
    E("    ds_write_b32 v14, v24 offset:4160")
    E("    s_waitcnt lgkmcnt(0)")
    E("    s_barrier")
    E("    v_mov_b32 v13, 0")
    E("    ds_read_b128 v[16:19], v13 offset:4160")
    E("    ds_read_b128 v[20:23], v13 offset:4176")
    E("    s_waitcnt lgkmcnt(0)")
    sum8(16, 24)
    E("    v_mul_f32 v24, s33, v24")
    rnd_bf16(24)
    E("    v_add_f32 v24, 0x3727c5ac, v24")
    rnd_bf16(24)
    E("    v_sqrt_f32 v24, v24")
    E("    s_nop 0")
    rnd_bf16(24)
    rnd_bf16(11)
    E("    v_sub_f32 v10, v10, v11")
    rnd_bf16(10)
    div_rnd(10, 24, 25, 26, 27)
    E("    v_lshlrev_b32 v6, 2, v0")
    E("    ds_write_b32 v6, v10")
    E("    s_waitcnt lgkmcnt(0)")
    E("    s_barrier")
    E("    v_lshlrev_b32 v8, 4, v4")
    E("    ds_read_b128 v[16:19], v8")
    for i in range(8):
        E(f"    v_mov_b32 v{64+i}, 0")
    E("    s_waitcnt lgkmcnt(0)")
    for p in range(4):
        gemv_unpack_fma(32+4*p, 64, f"v{16+p}", 28, 29)
    for i in range(8):
        stride_reduce(64+i, 28, 4)
    E("    v_lshlrev_b32 v8, 7, v3")
    E("    v_lshl_add_u32 v8, v5, 5, v8")
    E("    v_and_b32 v10, 63, v0")
    E("    v_cmp_gt_u32 vcc, 4, v10")
    E("    s_and_saveexec_b64 s[52:53], vcc")
    E("    ds_write_b128 v8, v[64:67] offset:4224")
    E("    ds_write_b128 v8, v[68:71] offset:4240")
    E("    s_mov_b64 exec, s[52:53]")
    E("    s_waitcnt lgkmcnt(0)")
    E("    s_barrier")
    E("    v_and_b32 v7, 31, v0")
    E("    v_lshlrev_b32 v8, 2, v7")
    for w in range(8):
        E(f"    ds_read_b32 v{16+w}, v8 offset:{4224 + w*128}")
    E("    s_waitcnt lgkmcnt(0)")
    sum8(16, 16)
    rnd_bf16(16)
    E("    v_lshlrev_b32 v15, 16, v15")
    E("    v_add_f32 v16, v16, v15")
    rnd_bf16(16)
    E("    v_max_f32 v16, 0, v16")
    E("    v_mul_f32 v16, v16, v16")
    rnd_bf16(16)
    E("    s_nop 1")
    for p in range(4):
        E(f"    s_add_u32 s12, s3, {8*p}")
        E("    s_nop 3")
        E(f"    v_readlane_b32 s{44+p}, v16, s12")
    for i in range(8):
        E(f"    v_mov_b32 v{64+i}, 0")
    E("    s_nop 1")
    for p in range(4):
        gemv_unpack_fma(48+4*p, 64, f"s{44+p}", 28, 29)
    E("    v_and_b32 v7, 63, v0")
    E("    v_lshlrev_b32 v8, 11, v3")
    E("    v_lshl_add_u32 v8, v7, 5, v8")
    E("    ds_write_b128 v8, v[64:67] offset:8192")
    E("    ds_write_b128 v8, v[68:71] offset:8208")
    E("    s_waitcnt lgkmcnt(0)")
    E("    s_barrier")
    for w in range(8):
        E(f"    ds_read_b32 v{16+w}, v6 offset:{8192 + w*2048}")
    E("    s_waitcnt lgkmcnt(0)")
    sum8(16, 16)
    E("    v_mov_b32 v17, 1")
    E("    v_lshlrev_b32 v8, 3, v0")
    E("    s_lshl_b32 s12, s14, 12")
    E(f"    s_add_u32 s12, s12, {FFG_OFF}")
    E("    buffer_store_dwordx2 v[16:17], v8, s[24:27], s12 offen sc1")
    stamp(3)
    E("    s_branch k3_end")
    E("r_fin:")
    E("    s_sub_u32 s14, s2, 120                 ; ri")
    srd(36, 82, 1024)
    srd(92, 64, 1024)
    E("    v_and_b32 v7, 63, v0")
    E("    s_lshl_b32 s12, s14, 6")
    E("    v_add_u32 v7, s12, v7                  ; col")
    E("    v_lshlrev_b32 v10, 1, v7")
    E("    buffer_load_ushort v12, v10, s[36:39], 0 offen   ; b2")
    E("    buffer_load_ushort v13, v10, s[92:95], 0 offen   ; x")
    E("    v_lshlrev_b32 v8, 3, v7                ; col*8")
    E("    v_lshl_add_u32 v11, v3, 12, v8         ; + wave*4096")
    E(f"    s_mov_b32 s56, {WOG_OFF}")
    for i in range(7):
        E(f"    s_mov_b32 s{57+i}, {FFG_OFF + i*32768}")
    poll_granules(8, 11, list(range(56, 64)), 64, "pz")
    stamp(4)
    for i in range(2, 8):
        E(f"    v_add_f32 v66, v66, v{64+2*i}")
    E("    v_lshlrev_b32 v6, 3, v0")
    E("    v_mov_b32 v65, v66")
    E("    ds_write_b64 v6, v[64:65]              ; {wo partial, ffn partial}")
    E("    s_waitcnt lgkmcnt(0)")
    E("    s_barrier")
    E("    s_cmp_lg_u32 s3, 0")
    E("    s_cbranch_scc1 k3_end")
    for w in range(8):
        E(f"    ds_read_b64 v[{16+2*w}:{17+2*w}], v6 offset:{w*512}")
    E("    s_waitcnt lgkmcnt(0)")
    for w in range(1, 8):
        E(f"    v_add_f32 v16, v16, v{16+2*w}")
    E("    s_nop 0")
    E("k3_fin_fix:")
    E("    s_branch k3_fin_cont")
    E("k3_fin_cont:")
    E("    s_endpgm")
    E("k3_end:")
    E("    s_endpgm")
    kd(name, 128)

E(HEADER.rstrip())
E("; @launch kernel=k1_qproj_kernel grid=(128,1,1) block=(256,1,1) lds=512")
E("; @launch kernel=k2_attn_kernel grid=(256,1,1) block=(512,1,1) lds=16640")
E("; @launch kernel=k3_tail_kernel grid=(128,1,1) block=(512,1,1) lds=24576")
E('.amdgcn_target "amdgcn-amd-amdhsa--gfx950"')
E(".text")
k1(); k2(); k3()
txt = "\n".join(out) + "\n"
fin = []
def F(s): fin.append(s)
for w in range(8):
    F(f"    ds_read_b64 v[{16+2*w}:{17+2*w}], v6 offset:{w*512}")
F("    s_waitcnt lgkmcnt(0)")
for (x, y) in ((16,18),(20,22),(24,26),(28,30),(16,20),(24,28),(16,24)):
    F(f"    v_add_f32 v{x}, v{x}, v{y}")
for (x, y) in ((17,19),(21,23),(25,27),(29,31),(17,21),(25,29),(17,25)):
    F(f"    v_add_f32 v{x}, v{x}, v{y}")
F("    v_cvt_pk_bf16_f32 v16, v16, v16")
F("    v_lshlrev_b32 v16, 16, v16")
F("    v_lshlrev_b32 v13, 16, v13")
F("    v_add_f32 v16, v16, v13")
F("    v_cvt_pk_bf16_f32 v16, v16, v16")
F("    v_lshlrev_b32 v16, 16, v16            ; h")
F("    v_cvt_pk_bf16_f32 v17, v17, v17")
F("    v_lshlrev_b32 v17, 16, v17")
F("    v_lshlrev_b32 v12, 16, v12")
F("    v_add_f32 v17, v17, v12")
F("    v_cvt_pk_bf16_f32 v17, v17, v17")
F("    v_lshlrev_b32 v17, 16, v17")
F("    v_add_f32 v17, v17, v16")
F("    v_cvt_pk_bf16_f32 v17, v17, v17")
F("    s_mov_b32 s36, s84")
F("    s_and_b32 s37, s85, 0xffff")
F("    s_mov_b32 s38, 1024")
F("    s_mov_b32 s39, 0x00020000")
F("    buffer_store_short v17, v10, s[36:39], 0 offen")
a = txt.index("    ds_read_b64 v[16:17], v6 offset:0\n")
b = txt.index("k3_end:\n")
txt = txt[:a] + "\n".join(fin) + "\n" + txt[b:]
open(sys.argv[1], "w").write(txt)
print("ok")
```

```python
import sys, os
base = open("gen8.py").read()
a = base.index("# pull K1 and K2 bodies from gen1 (verified)")
exec(base[:a])
b0 = base.index("def poll_granules(")
b1 = base.index('E(HEADER.rstrip())')
exec(base[b0:b1])
NT = " nt"
QG_OFF = 16384
LDS_Q = 16640
LDS_RED = 17920
PRE = int(os.environ.get("PRE", "4"))

def stampk2(k):
    if not TS: return
    _l[0] += 1
    E(f"    s_cmp_lg_u32 s3, 0")
    E(f"    s_cbranch_scc1 ts_skip{_l[0]}")
    E("    s_memrealtime s[54:55]")
    E("    s_waitcnt lgkmcnt(0)")
    E("    v_mov_b32 v250, s54")
    E("    v_mov_b32 v251, s55")
    E("    s_lshl_b32 s54, s2, 7")
    E(f"    s_add_u32 s54, s54, {(1<<21) + k*8}")
    E("    v_mov_b32 v252, s54")
    E("    s_mov_b64 s[52:53], exec")
    E("    s_mov_b64 exec, 1")
    E("    global_store_dwordx2 v252, v[250:251], s[88:89]")
    E("    s_mov_b64 exec, s[52:53]")
    E("    s_waitcnt vmcnt(0)")
    E(f"ts_skip{_l[0]}:")

def get_tag(lbl):
    E("    s_mov_b32 s50, 0")
    E("    v_mov_b32 v9, 0")
    E(f"{lbl}_loop:")
    E("    global_load_dword v8, v9, s[86:87] sc1")
    E("    s_waitcnt vmcnt(0)")
    E("    v_readfirstlane_b32 s34, v8")
    E("    s_add_u32 s50, s50, 1")
    E("    s_cmp_lg_u32 s34, 0")
    E(f"    s_cbranch_scc1 {lbl}_done")
    E(f"    s_cmp_lt_u32 s50, {POLL_LIMIT}")
    E(f"    s_cbranch_scc1 {lbl}_loop")
    E(f"{lbl}_done:")

def k2():
    name = "k2_attn_kernel"
    NIT = 8
    kstart(name)
    Q0 = 16; K0 = [32, 64]; V0 = [96, 128]; VT = 160; O0 = 192; S0 = 224; P0 = 232
    M, L, AL, T0, T1, T2, T3, MN = 236, 237, 238, 239, 240, 241, 242, 243
    E("    s_cmp_ge_u32 s2, 256")
    E("    s_cbranch_scc1 k2_end")
    E("    s_load_dwordx16 s[64:79], s[0:1], 0")
    E("    s_load_dwordx8 s[80:87], s[0:1], 64")
    E("    s_load_dwordx2 s[88:89], s[0:1], 96    ; ws")
    E("    v_readfirstlane_b32 s3, v0")
    E("    s_nop 3")
    E("    s_lshr_b32 s3, s3, 6                   ; wave")
    E("    s_lshr_b32 s10, s2, 5                  ; kvh")
    E("    s_and_b32 s11, s2, 31                  ; split")
    E("    s_mov_b32 s28, 0x05040100")
    E("    s_mov_b32 s29, 0x07060302")
    E(f"    s_mov_b32 s30, {SCALE}")
    E(f"    s_mov_b32 s31, {LOG2E}")
    E("    s_mov_b32 s33, 0x3b000000")
    for it in range(NIT):
        E(f"    s_mov_b32 s{40+it}, {it*65536}")
    E("    v_and_b32 v1, 15, v0                   ; r")
    E("    v_bfe_u32 v2, v0, 4, 2                 ; g")
    E("    v_lshrrev_b32 v3, 6, v0                ; wave")
    E("    v_lshrrev_b32 v4, 2, v1")
    E("    v_lshlrev_b32 v4, 11, v4")
    E("    v_and_b32 v5, 3, v1")
    E("    v_lshl_add_u32 v4, v5, 8, v4")
    E("    v_lshl_add_u32 v4, v2, 4, v4")
    E("    v_lshl_add_u32 v4, v3, 13, v4          ; vK")
    E("    v_lshlrev_b32 v5, 11, v2")
    E("    v_lshl_add_u32 v5, v1, 4, v5")
    E("    v_lshl_add_u32 v5, v3, 13, v5          ; vV")
    E("    s_lshl_b32 s12, s10, 24")
    E("    s_lshl_b32 s13, s11, 19")
    E("    s_add_u32 s12, s12, s13")
    E("    s_waitcnt lgkmcnt(0)")
    E("    s_add_u32 s4, s66, s12")
    E("    s_addc_u32 s5, s67, 0")
    E("    s_add_u32 s6, s68, s12")
    E("    s_addc_u32 s7, s69, 0")
    srd(16, 4, 524288)
    srd(20, 6, 524288)
    srd(24, 88, 536870912)
    stampk2(0)
    E("    s_or_b32 s12, s2, s3")
    E("    s_cmp_lg_u32 s12, 0")
    E("    s_cbranch_scc1 tag_pub_done")
    E("    s_memrealtime s[54:55]")
    E("    s_waitcnt lgkmcnt(0)")
    E("    s_or_b32 s54, s54, 1")
    E("    v_mov_b32 v8, s54")
    E("    v_mov_b32 v9, 0")
    E("    s_mov_b64 s[52:53], exec")
    E("    s_mov_b64 exec, 1")
    E("    global_store_dword v9, v8, s[86:87] sc1")
    E("    s_mov_b64 exec, s[52:53]")
    E("tag_pub_done:")
    E("    s_cmp_ge_u32 s2, 128")
    E("    s_cbranch_scc1 pro_q")
    E("    v_mov_b32 v8, 0")
    E("    v_mov_b32 v9, 0")
    E("    v_lshlrev_b32 v6, 3, v0")
    E("    s_lshl_b32 s12, s2, 11")
    E(f"    s_add_u32 s12, s12, {WOG_OFF}")
    E("    v_cmp_gt_u32 vcc, 256, v0")
    E("    s_and_saveexec_b64 s[52:53], vcc")
    E("    buffer_store_dwordx2 v[8:9], v6, s[24:27], s12 offen")
    E("    s_mov_b64 exec, s[52:53]")
    E("    s_waitcnt vmcnt(0)")
    E("    s_branch pro_done")
    E("pro_q:")
    E("    s_sub_u32 s14, s2, 128                 ; qi")
    srd(36, 70, 512*4096*2)
    srd(92, 64, 1024)
    E("    v_lshrrev_b32 v6, 2, v0                ; rs 0..127")
    E("    v_and_b32 v7, 3, v0                    ; ch")
    E("    v_and_b32 v8, 63, v0")
    E("    v_lshlrev_b32 v8, 4, v8")
    E("    v_lshlrev_b32 v9, 3, v6")
    E("    buffer_load_dwordx4 v[8:11], v8, s[92:95], 0 offen")
    E("    buffer_load_dwordx2 v[12:13], v9, s[92:95], 0 offen")
    E("    v_lshlrev_b32 v6, 15, v6")
    E("    v_lshl_add_u32 v6, v7, 4, v6")
    E("    s_lshl_b32 s12, s14, 6")
    for p in range(4):
        E(f"    s_add_u32 s13, s12, {p*8192}")
        E(f"    buffer_load_dwordx4 v[{32+4*p}:{35+4*p}], v6, s[36:39], s13 offen")
    E("    s_waitcnt vmcnt(5)")
    for d in range(4):
        E(f"    v_lshlrev_b32 v{16+2*d}, 16, v{8+d}")
        E(f"    v_and_b32 v{17+2*d}, 0xffff0000, v{8+d}")
    E("    v_add_f32 v24, v16, v17")
    for v in range(18, 24):
        E(f"    v_add_f32 v24, v24, v{v}")
    wave_reduce("v_add_f32", 24, 25)
    E("    v_mul_f32 v24, s33, v24")
    E("    v_sub_f32 v25, v16, v24")
    E("    v_mul_f32 v27, v25, v25")
    for v in range(17, 24):
        E(f"    v_sub_f32 v25, v{v}, v24")
        E("    v_fmac_f32 v27, v25, v25")
    wave_reduce("v_add_f32", 27, 25)
    E("    v_mul_f32 v27, s33, v27")
    rnd_bf16(27)
    E("    v_add_f32 v27, 0x3727c5ac, v27")
    rnd_bf16(27)
    E("    v_sqrt_f32 v27, v27")
    E("    s_nop 0")
    rnd_bf16(27)
    rnd_bf16(24)
    E("    s_waitcnt vmcnt(4)")
    for d in range(2):
        E(f"    v_lshlrev_b32 v{16+2*d}, 16, v{12+d}")
        E(f"    v_and_b32 v{17+2*d}, 0xffff0000, v{12+d}")
    for i in range(4):
        E(f"    v_sub_f32 v{16+i}, v{16+i}, v24")
        rnd_bf16(16+i)
        div_rnd(16+i, 27, 28, 29, 30)
    for i in range(8):
        E(f"    v_mov_b32 v{64+i}, 0")
    for p in range(4):
        E(f"    s_waitcnt vmcnt({3-p})")
        gemv_unpack_fma(32+4*p, 64, f"v{16+p}", 28, 29)
    for i in range(8):
        stride_reduce(64+i, 28, 4)
    E("    v_lshlrev_b32 v6, 7, v3")
    E("    v_lshl_add_u32 v6, v7, 5, v6")
    E("    v_and_b32 v8, 63, v0")
    E("    v_cmp_gt_u32 vcc, 4, v8")
    E("    s_and_saveexec_b64 s[52:53], vcc")
    E(f"    ds_write_b128 v6, v[64:67] offset:{LDS_RED}")
    E(f"    ds_write_b128 v6, v[68:71] offset:{LDS_RED+16}")
    E("    s_mov_b64 exec, s[52:53]")
    E("    s_waitcnt lgkmcnt(0)")
    E("    s_barrier")
    E("    s_cmp_lg_u32 s3, 0")
    E("    s_cbranch_scc1 pro_done")
    E("    v_lshlrev_b32 v6, 3, v0")
    for w in range(8):
        E(f"    ds_read_b64 v[{10+2*w}:{11+2*w}], v6 offset:{LDS_RED + w*128}")
    get_tag("tq")
    E("    s_waitcnt lgkmcnt(0)")
    for k in range(2):
        E(f"    v_add_f32 v{10+k}, v{10+k}, v{12+k}")
        E(f"    v_add_f32 v{14+k}, v{14+k}, v{16+k}")
        E(f"    v_add_f32 v{18+k}, v{18+k}, v{20+k}")
        E(f"    v_add_f32 v{22+k}, v{22+k}, v{24+k}")
        E(f"    v_add_f32 v{10+k}, v{10+k}, v{14+k}")
        E(f"    v_add_f32 v{18+k}, v{18+k}, v{22+k}")
        E(f"    v_add_f32 v{10+k}, v{10+k}, v{18+k}")
    E("    v_cvt_pk_bf16_f32 v10, v10, v11")
    E("    v_mov_b32 v11, s34")
    E("    s_lshl_b32 s12, s14, 7")
    E("    v_cmp_gt_u32 vcc, 16, v0")
    E("    s_and_saveexec_b64 s[52:53], vcc")
    E(f"    buffer_store_dwordx2 v[10:11], v6, s[24:27], s12 offen offset:{QG_OFF - 16384 if False else 0} sc1".replace("offset:0 sc1", "sc1"))
    out[-1] = f"    s_add_u32 s12, s12, {QG_OFF}\n    buffer_store_dwordx2 v[10:11], v6, s[24:27], s12 offen sc1"
    E("    s_mov_b64 exec, s[52:53]")
    stampk2(1)
    E("pro_done:")
    def loadK(it):
        st = it & 1
        for t in range(2):
            for j in range(4):
                b = K0[st] + (t*4+j)*4
                E(f"    buffer_load_dwordx4 v[{b}:{b+3}], v4, s[16:19], s{40+it} offen offset:{t*1024+j*64}{NT}")
    def loadV(it):
        st = it & 1
        for i in range(8):
            b = V0[st] + i*4
            E(f"    buffer_load_dwordx4 v[{b}:{b+3}], v5, s[20:23], s{40+it} offen offset:{i*256}{NT}")
    E("    s_cmp_eq_u32 s3, 0")
    E("    s_cbranch_scc1 att_w0")
    seq = [lambda: loadK(0), lambda: loadV(0), lambda: loadK(1), lambda: loadV(1)]
    for f in seq[:PRE]: f()
    E("    s_barrier")
    for f in seq[PRE:]: f()
    E("    s_branch att_common")
    E("att_w0:")
    get_tag("tc")
    E("    v_lshlrev_b32 v6, 5, v0                ; lane*32")
    E("    s_lshl_b32 s12, s10, 11                ; kvh*2048")
    E(f"    s_add_u32 s12, s12, {QG_OFF}")
    E("    v_mov_b32 v7, s34")
    E("    s_mov_b32 s50, 0")
    E("qp_loop:")
    E("    buffer_load_dwordx4 v[8:11], v6, s[24:27], s12 offen sc1")
    E("    buffer_load_dwordx4 v[12:15], v6, s[24:27], s12 offen offset:16 sc1")
    E("    s_waitcnt vmcnt(0)")
    E("    v_cmp_eq_u32 vcc, v9, v7")
    E("    v_cmp_eq_u32 s[52:53], v11, v7")
    E("    s_and_b64 vcc, vcc, s[52:53]")
    E("    v_cmp_eq_u32 s[52:53], v13, v7")
    E("    s_and_b64 vcc, vcc, s[52:53]")
    E("    v_cmp_eq_u32 s[52:53], v15, v7")
    E("    s_and_b64 vcc, vcc, s[52:53]")
    E("    s_add_u32 s50, s50, 1")
    E("    s_cmp_eq_u64 vcc, exec")
    E("    s_cbranch_scc1 qp_done")
    E(f"    s_cmp_lt_u32 s50, {POLL_LIMIT}")
    E("    s_cbranch_scc1 qp_loop")
    E("qp_done:")
    E("    v_mov_b32 v9, v10")
    E("    v_mov_b32 v10, v12")
    E("    v_mov_b32 v11, v14")
    E("    v_lshlrev_b32 v6, 4, v0")
    E(f"    ds_write_b128 v6, v[8:11] offset:{LDS_Q}")
    E("    s_waitcnt lgkmcnt(0)")
    stampk2(2)
    E("    s_barrier")
    loadK(0); loadV(0); loadK(1); loadV(1)
    E("att_common:")
    for i in range(16):
        E(f"    v_mov_b32 v{Q0+i}, 0")
    E("    v_lshlrev_b32 v6, 8, v1")
    E("    v_lshl_add_u32 v6, v2, 4, v6")
    E("    v_cmp_gt_u32 vcc, 4, v1")
    E("    s_and_saveexec_b64 s[52:53], vcc")
    for j in range(4):
        E(f"    ds_read_b128 v[{Q0+4*j}:{Q0+4*j+3}], v6 offset:{LDS_Q + j*64}")
    E("    s_mov_b64 exec, s[52:53]")
    E(f"    v_mov_b32 v{M}, 0xff800000")
    E(f"    v_mov_b32 v{L}, 0")
    for i in range(32):
        E(f"    v_mov_b32 v{O0+i}, 0")
    E("    s_waitcnt lgkmcnt(0)")
    for it in range(NIT):
        st = it & 1
        E(f"    s_waitcnt vmcnt({8 + (16 if it+1 < NIT else 0)})")
        for t in range(2):
            for j in range(4):
                b = K0[st] + (t*4+j)*4
                c = "0" if j == 0 else f"v[{S0+4*t}:{S0+4*t+3}]"
                E(f"    v_mfma_f32_16x16x32_bf16 v[{S0+4*t}:{S0+4*t+3}], v[{b}:{b+3}], v[{Q0+4*j}:{Q0+4*j+3}], {c}")
        if it+2 < NIT:
            loadK(it+2)
        E("    s_nop 7")
        E("    s_nop 3")
        for pr in range(4):
            a, b = S0+2*pr, S0+2*pr+1
            E(f"    v_cvt_pk_bf16_f32 v{T0}, v{a}, v{b}")
            E(f"    v_lshlrev_b32 v{a}, 16, v{T0}")
            E(f"    v_and_b32 v{b}, 0xffff0000, v{T0}")
            E(f"    v_mul_f32 v{a}, s30, v{a}")
            E(f"    v_mul_f32 v{b}, s30, v{b}")
            E(f"    v_cvt_pk_bf16_f32 v{T0}, v{a}, v{b}")
            E(f"    v_lshlrev_b32 v{a}, 16, v{T0}")
            E(f"    v_and_b32 v{b}, 0xffff0000, v{T0}")
        E(f"    v_max3_f32 v{T0}, v{S0}, v{S0+1}, v{S0+2}")
        E(f"    v_max3_f32 v{T0}, v{T0}, v{S0+3}, v{S0+4}")
        E(f"    v_max3_f32 v{T0}, v{T0}, v{S0+5}, v{S0+6}")
        E(f"    v_max_f32 v{T0}, v{T0}, v{S0+7}")
        swap_red("v_max_f32", T0, T1, 16)
        E(f"    v_mov_b32 v{T1}, v{T0}")
        E("    s_nop 1")
        E(f"    v_permlane32_swap_b32 v{T0}, v{T1}")
        E("    s_nop 1")
        E(f"    v_max3_f32 v{MN}, v{T0}, v{T1}, v{M}")
        E(f"    v_sub_f32 v{AL}, v{M}, v{MN}")
        E(f"    v_mul_f32 v{AL}, s31, v{AL}")
        E(f"    v_exp_f32 v{AL}, v{AL}")
        E(f"    v_mov_b32 v{M}, v{MN}")
        E(f"    v_mul_f32 v{T2}, s31, v{MN}")
        for i in range(8):
            E(f"    v_fma_f32 v{S0+i}, v{S0+i}, s31, -v{T2}")
        for i in range(8):
            E(f"    v_exp_f32 v{S0+i}, v{S0+i}")
        E("    s_nop 0")
        E(f"    v_add_f32 v{T0}, v{S0}, v{S0+1}")
        E(f"    v_add_f32 v{T1}, v{S0+2}, v{S0+3}")
        E(f"    v_add_f32 v{T2}, v{S0+4}, v{S0+5}")
        E(f"    v_add_f32 v{T3}, v{S0+6}, v{S0+7}")
        E(f"    v_add_f32 v{T0}, v{T0}, v{T1}")
        E(f"    v_add_f32 v{T2}, v{T2}, v{T3}")
        E(f"    v_add_f32 v{T0}, v{T0}, v{T2}")
        E(f"    v_fma_f32 v{L}, v{L}, v{AL}, v{T0}")
        for q in range(4):
            E(f"    v_cvt_pk_bf16_f32 v{P0+q}, v{S0+2*q}, v{S0+2*q+1}")
        for i in range(32):
            E(f"    v_mul_f32 v{O0+i}, v{AL}, v{O0+i}")
        E(f"    s_waitcnt vmcnt({(16 if it+1 < NIT else 0) + (8 if it+2 < NIT else 0)})")
        for d in range(4):
            for q in range(4):
                a = V0[st] + (2*q+1)*4 + d
                b = V0[st] + (2*q)*4 + d
                E(f"    v_perm_b32 v{VT + (2*d)*4 + q}, v{a}, v{b}, s28")
                E(f"    v_perm_b32 v{VT + (2*d+1)*4 + q}, v{a}, v{b}, s29")
        E("    s_nop 1")
        for e in range(8):
            E(f"    v_mfma_f32_16x16x32_bf16 v[{O0+4*e}:{O0+4*e+3}], v[{VT+4*e}:{VT+4*e+3}], v[{P0}:{P0+3}], v[{O0+4*e}:{O0+4*e+3}]")
        if it+2 < NIT:
            loadV(it+2)
        E("    s_nop 7")
        E("    s_nop 3")
    swap_red("v_add_f32", L, T1, 16)
    swap_red("v_add_f32", L, T1, 32)
    E("    v_lshlrev_b32 v8, 11, v3")
    E("    v_lshl_add_u32 v8, v1, 9, v8")
    E("    v_lshl_add_u32 v8, v2, 7, v8")
    E("    v_lshlrev_b32 v9, 5, v3")
    E("    v_lshl_add_u32 v9, v1, 3, v9")
    E("    v_cmp_gt_u32 vcc, 4, v1")
    E("    s_and_saveexec_b64 s[52:53], vcc")
    for e in range(8):
        for jj in range(4):
            E(f"    ds_write_b32 v8, v{O0+4*e+jj} offset:{(jj*8+e)*4}")
    E(f"    v_mov_b32 v10, v{M}")
    E(f"    v_mov_b32 v11, v{L}")
    E("    ds_write_b64 v9, v[10:11] offset:16384")
    E("    s_mov_b64 exec, s[52:53]")
    E("    s_waitcnt lgkmcnt(0)")
    E("    s_barrier")
    stampk2(3)
    E("    v_lshrrev_b32 v1, 7, v0")
    E("    v_and_b32 v2, 127, v0")
    E("    v_lshlrev_b32 v3, 3, v1")
    for w in range(8):
        E(f"    ds_read_b64 v[{16+2*w}:{17+2*w}], v3 offset:{16384 + w*32}")
    E("    v_lshlrev_b32 v4, 9, v1")
    E("    v_lshl_add_u32 v4, v2, 2, v4")
    for w in range(8):
        E(f"    ds_read_b32 v{32+w}, v4 offset:{w*2048}")
    E("    s_waitcnt lgkmcnt(0)")
    E("    v_max3_f32 v5, v16, v18, v20")
    E("    v_max3_f32 v5, v5, v22, v24")
    E("    v_max3_f32 v5, v5, v26, v28")
    E("    v_max_f32 v5, v5, v30")
    E("    v_mov_b32 v6, 0")
    E("    v_mov_b32 v7, 0")
    for w in range(8):
        E(f"    v_sub_f32 v8, v{16+2*w}, v5")
        E("    v_mul_f32 v8, s31, v8")
        E("    v_exp_f32 v8, v8")
        E("    s_nop 0")
        E(f"    v_fmac_f32 v6, v8, v{32+w}")
        E(f"    v_fmac_f32 v7, v8, v{17+2*w}")
    E("    s_lshl_b32 s12, s10, 7")
    E("    s_add_u32 s12, s12, s11")
    E("    v_lshlrev_b32 v9, 5, v1")
    E("    v_add_u32 v9, s12, v9")
    E("    v_lshlrev_b32 v10, 9, v9")
    E("    v_lshl_add_u32 v10, v2, 2, v10")
    E(f"    s_mov_b32 s13, {PART_OFF}")
    E("    buffer_store_dword v6, v10, s[24:27], s13 offen")
    E("    v_cmp_eq_u32 vcc, 0, v2")
    E("    s_and_saveexec_b64 s[52:53], vcc")
    E("    v_lshlrev_b32 v10, 3, v9")
    E("    v_mov_b32 v6, v5")
    E(f"    s_mov_b32 s13, {ML_OFF}")
    E("    buffer_store_dwordx2 v[6:7], v10, s[24:27], s13 offen")
    E("k2_end:")
    E("    s_endpgm")
    kd(name, 256 if TS else 244)

E(HEADER.rstrip())
E("; @launch kernel=k2_attn_kernel grid=(256,1,1) block=(512,1,1) lds=19968")
E("; @launch kernel=k3_tail_kernel grid=(128,1,1) block=(512,1,1) lds=24576")
E('.amdgcn_target "amdgcn-amd-amdhsa--gfx950"')
E(".text")
k2(); k3()
txt = "\n".join(out) + "\n"
c0 = base.index("# final role tail (written here for clarity)")
c1 = base.index("open(sys.argv[1], \"w\").write(txt)")
exec(base[c0:c1])
open(sys.argv[1], "w").write(txt)
print("ok")
```

```python
import sys, os
base = open("gen8.py").read()
a = base.index("# pull K1 and K2 bodies from gen1 (verified)")
exec(base[:a])
b0 = base.index("def poll_granules(")
b1 = base.index('E(HEADER.rstrip())')
exec(base[b0:b1])
NT = " nt"
PART_OFF = 65536
ML_OFF = PART_OFF + 32*32*128*8
WOG_OFF = ML_OFF + 32*32*16
FFG_OFF = WOG_OFF + 8*512*8
def poll_granules(n, vaddr, soffs, vdst, lbl, imm=None, wide=False):
    E("    s_mov_b32 s50, 0")
    E("    v_mov_b32 v110, s34")
    E(f"{lbl}_loop:")
    if wide:
        E(f"    buffer_load_dwordx4 v[{vdst}:{vdst+3}], v{vaddr}, s[24:27], s{soffs[0]} offen sc1")
        E("    s_waitcnt vmcnt(0)")
        tags = [vdst+1, vdst+3]
    else:
        for i in range(n):
            off = f" offset:{imm[i]}" if imm else ""
            E(f"    buffer_load_dwordx2 v[{vdst+2*i}:{vdst+2*i+1}], v{vaddr}, s[24:27], s{soffs[i]} offen{off} sc1")
        E("    s_waitcnt vmcnt(0)")
        tags = [vdst+2*i+1 for i in range(n)]
    E(f"    v_xor_b32 v9, v110, v{tags[0]}")
    for t in tags[1:]:
        E(f"    v_xor_b32 v111, v110, v{t}")
        E("    v_or_b32 v9, v9, v111")
    E("    v_cmp_eq_u32 vcc, 0, v9")
    E("    s_add_u32 s50, s50, 1")
    E("    s_nop 1")
    E("    s_cmp_eq_u64 vcc, exec")
    E(f"    s_cbranch_scc1 {lbl}_done")
    E(f"    s_cmp_lt_u32 s50, {POLL_LIMIT}")
    E(f"    s_cbranch_scc1 {lbl}_loop")
    E(f"{lbl}_done:")
QG_OFF = 16384
LDS_Q = 16640
LDS_RED = 17920
PRE = int(os.environ.get("PRE", "4"))

def stampk2(k):
    if not TS: return
    _l[0] += 1
    E(f"    s_cmp_lg_u32 s3, 0")
    E(f"    s_cbranch_scc1 ts_skip{_l[0]}")
    E("    s_memrealtime s[54:55]")
    E("    s_waitcnt lgkmcnt(0)")
    E("    v_mov_b32 v250, s54")
    E("    v_mov_b32 v251, s55")
    E("    s_lshl_b32 s54, s2, 7")
    E(f"    s_add_u32 s54, s54, {(1<<21) + k*8}")
    E("    v_mov_b32 v252, s54")
    E("    s_mov_b64 s[52:53], exec")
    E("    s_mov_b64 exec, 1")
    E("    global_store_dwordx2 v252, v[250:251], s[88:89]")
    E("    s_mov_b64 exec, s[52:53]")
    E("    s_waitcnt vmcnt(0)")
    E(f"ts_skip{_l[0]}:")

def get_tag(lbl):
    E("    s_mov_b32 s50, 0")
    E("    v_mov_b32 v9, 0")
    E(f"{lbl}_loop:")
    E("    global_load_dword v8, v9, s[86:87] sc1")
    E("    s_waitcnt vmcnt(0)")
    E("    v_readfirstlane_b32 s34, v8")
    E("    s_add_u32 s50, s50, 1")
    E("    s_cmp_lg_u32 s34, 0")
    E(f"    s_cbranch_scc1 {lbl}_done")
    E(f"    s_cmp_lt_u32 s50, {POLL_LIMIT}")
    E(f"    s_cbranch_scc1 {lbl}_loop")
    E(f"{lbl}_done:")

def k2():
    name = "k2_attn_kernel"
    NIT = 8
    kstart(name)
    Q0 = 16; K0 = [32, 64]; V0 = [96, 128]; VT = 160; O0 = 192; S0 = 224; P0 = 232
    M, L, AL, T0, T1, T2, T3, MN = 236, 237, 238, 239, 240, 241, 242, 243
    E("    s_cmp_ge_u32 s2, 256")
    E("    s_cbranch_scc1 k2_end")
    E("    s_load_dwordx16 s[64:79], s[0:1], 0")
    E("    s_load_dwordx8 s[80:87], s[0:1], 64")
    E("    s_load_dwordx2 s[88:89], s[0:1], 96    ; ws")
    E("    v_readfirstlane_b32 s3, v0")
    E("    s_nop 3")
    E("    s_lshr_b32 s3, s3, 6                   ; wave")
    E("    s_lshr_b32 s10, s2, 5                  ; kvh")
    E("    s_and_b32 s11, s2, 31                  ; split")
    E("    s_mov_b32 s28, 0x05040100")
    E("    s_mov_b32 s29, 0x07060302")
    E(f"    s_mov_b32 s30, {SCALE}")
    E(f"    s_mov_b32 s31, {LOG2E}")
    E("    s_mov_b32 s33, 0x3b000000")
    for it in range(NIT):
        E(f"    s_mov_b32 s{40+it}, {it*65536}")
    E("    v_and_b32 v1, 15, v0                   ; r")
    E("    v_bfe_u32 v2, v0, 4, 2                 ; g")
    E("    v_lshrrev_b32 v3, 6, v0                ; wave")
    E("    v_lshrrev_b32 v4, 2, v1")
    E("    v_lshlrev_b32 v4, 11, v4")
    E("    v_and_b32 v5, 3, v1")
    E("    v_lshl_add_u32 v4, v5, 8, v4")
    E("    v_lshl_add_u32 v4, v2, 4, v4")
    E("    v_lshl_add_u32 v4, v3, 13, v4          ; vK")
    E("    v_lshlrev_b32 v5, 11, v2")
    E("    v_lshl_add_u32 v5, v1, 4, v5")
    E("    v_lshl_add_u32 v5, v3, 13, v5          ; vV")
    E("    s_lshl_b32 s12, s10, 24")
    E("    s_lshl_b32 s13, s11, 19")
    E("    s_add_u32 s12, s12, s13")
    E("    s_waitcnt lgkmcnt(0)")
    E("    s_add_u32 s4, s66, s12")
    E("    s_addc_u32 s5, s67, 0")
    E("    s_add_u32 s6, s68, s12")
    E("    s_addc_u32 s7, s69, 0")
    srd(16, 4, 524288)
    srd(20, 6, 524288)
    srd(24, 88, 536870912)
    stampk2(0)
    E("    s_or_b32 s12, s2, s3")
    E("    s_cmp_lg_u32 s12, 0")
    E("    s_cbranch_scc1 tag_pub_done")
    E("    s_memrealtime s[54:55]")
    E("    s_waitcnt lgkmcnt(0)")
    E("    s_or_b32 s54, s54, 1")
    E("    v_mov_b32 v8, s54")
    E("    v_mov_b32 v9, 0")
    E("    s_mov_b64 s[52:53], exec")
    E("    s_mov_b64 exec, 1")
    E("    global_store_dword v9, v8, s[86:87] sc1")
    E("    s_mov_b64 exec, s[52:53]")
    E("tag_pub_done:")
    E("    s_cmp_ge_u32 s2, 128")
    E("    s_cbranch_scc1 pro_q")
    E("    s_branch pro_done")
    E("pro_q:")
    E("    s_sub_u32 s14, s2, 128                 ; qi")
    srd(36, 70, 512*4096*2)
    srd(92, 64, 1024)
    E("    v_lshrrev_b32 v6, 2, v0                ; rs 0..127")
    E("    v_and_b32 v7, 3, v0                    ; ch")
    E("    v_and_b32 v8, 63, v0")
    E("    v_lshlrev_b32 v8, 4, v8")
    E("    v_lshlrev_b32 v9, 3, v6")
    E("    buffer_load_dwordx4 v[8:11], v8, s[92:95], 0 offen")
    E("    buffer_load_dwordx2 v[12:13], v9, s[92:95], 0 offen")
    E("    v_lshlrev_b32 v6, 15, v6")
    E("    v_lshl_add_u32 v6, v7, 4, v6")
    E("    s_lshl_b32 s12, s14, 6")
    for p in range(4):
        E(f"    s_add_u32 s13, s12, {p*8192}")
        E(f"    buffer_load_dwordx4 v[{32+4*p}:{35+4*p}], v6, s[36:39], s13 offen")
    E("    s_waitcnt vmcnt(5)")
    for d in range(4):
        E(f"    v_lshlrev_b32 v{16+2*d}, 16, v{8+d}")
        E(f"    v_and_b32 v{17+2*d}, 0xffff0000, v{8+d}")
    E("    v_add_f32 v24, v16, v17")
    for v in range(18, 24):
        E(f"    v_add_f32 v24, v24, v{v}")
    wave_reduce("v_add_f32", 24, 25)
    E("    v_mul_f32 v24, s33, v24")
    E("    v_sub_f32 v25, v16, v24")
    E("    v_mul_f32 v27, v25, v25")
    for v in range(17, 24):
        E(f"    v_sub_f32 v25, v{v}, v24")
        E("    v_fmac_f32 v27, v25, v25")
    wave_reduce("v_add_f32", 27, 25)
    E("    v_mul_f32 v27, s33, v27")
    rnd_bf16(27)
    E("    v_add_f32 v27, 0x3727c5ac, v27")
    rnd_bf16(27)
    E("    v_sqrt_f32 v27, v27")
    E("    s_nop 0")
    rnd_bf16(27)
    rnd_bf16(24)
    E("    s_waitcnt vmcnt(4)")
    for d in range(2):
        E(f"    v_lshlrev_b32 v{16+2*d}, 16, v{12+d}")
        E(f"    v_and_b32 v{17+2*d}, 0xffff0000, v{12+d}")
    for i in range(4):
        E(f"    v_sub_f32 v{16+i}, v{16+i}, v24")
        rnd_bf16(16+i)
        div_rnd(16+i, 27, 28, 29, 30)
    for i in range(8):
        E(f"    v_mov_b32 v{64+i}, 0")
    for p in range(4):
        E(f"    s_waitcnt vmcnt({3-p})")
        gemv_unpack_fma(32+4*p, 64, f"v{16+p}", 28, 29)
    for i in range(8):
        stride_reduce(64+i, 28, 4)
    E("    v_lshlrev_b32 v6, 7, v3")
    E("    v_lshl_add_u32 v6, v7, 5, v6")
    E("    v_and_b32 v8, 63, v0")
    E("    v_cmp_gt_u32 vcc, 4, v8")
    E("    s_and_saveexec_b64 s[52:53], vcc")
    E(f"    ds_write_b128 v6, v[64:67] offset:{LDS_RED}")
    E(f"    ds_write_b128 v6, v[68:71] offset:{LDS_RED+16}")
    E("    s_mov_b64 exec, s[52:53]")
    E("    s_waitcnt lgkmcnt(0)")
    E("    s_barrier")
    E("    s_cmp_lg_u32 s3, 0")
    E("    s_cbranch_scc1 pro_done")
    E("    v_lshlrev_b32 v6, 3, v0")
    for w in range(8):
        E(f"    ds_read_b64 v[{10+2*w}:{11+2*w}], v6 offset:{LDS_RED + w*128}")
    get_tag("tq")
    E("    s_waitcnt lgkmcnt(0)")
    for k in range(2):
        E(f"    v_add_f32 v{10+k}, v{10+k}, v{12+k}")
        E(f"    v_add_f32 v{14+k}, v{14+k}, v{16+k}")
        E(f"    v_add_f32 v{18+k}, v{18+k}, v{20+k}")
        E(f"    v_add_f32 v{22+k}, v{22+k}, v{24+k}")
        E(f"    v_add_f32 v{10+k}, v{10+k}, v{14+k}")
        E(f"    v_add_f32 v{18+k}, v{18+k}, v{22+k}")
        E(f"    v_add_f32 v{10+k}, v{10+k}, v{18+k}")
    E("    v_cvt_pk_bf16_f32 v10, v10, v11")
    E("    v_mov_b32 v11, s34")
    E("    s_lshl_b32 s12, s14, 7")
    E("    v_cmp_gt_u32 vcc, 16, v0")
    E("    s_and_saveexec_b64 s[52:53], vcc")
    E(f"    buffer_store_dwordx2 v[10:11], v6, s[24:27], s12 offen offset:{QG_OFF - 16384 if False else 0} sc1".replace("offset:0 sc1", "sc1"))
    out[-1] = f"    s_add_u32 s12, s12, {QG_OFF}\n    buffer_store_dwordx2 v[10:11], v6, s[24:27], s12 offen sc1"
    E("    s_mov_b64 exec, s[52:53]")
    stampk2(1)
    E("pro_done:")
    def loadK(it):
        st = it & 1
        for t in range(2):
            for j in range(4):
                b = K0[st] + (t*4+j)*4
                E(f"    buffer_load_dwordx4 v[{b}:{b+3}], v4, s[16:19], s{40+it} offen offset:{t*1024+j*64}{NT}")
    def loadV(it):
        st = it & 1
        for i in range(8):
            b = V0[st] + i*4
            E(f"    buffer_load_dwordx4 v[{b}:{b+3}], v5, s[20:23], s{40+it} offen offset:{i*256}{NT}")
    E("    s_cmp_eq_u32 s3, 0")
    E("    s_cbranch_scc1 att_w0")
    seq = [lambda: loadK(0), lambda: loadV(0), lambda: loadK(1), lambda: loadV(1)]
    for f in seq[:PRE]: f()
    E("    s_barrier")
    for f in seq[PRE:]: f()
    E("    s_branch att_common")
    E("att_w0:")
    get_tag("tc")
    E("    v_lshlrev_b32 v6, 5, v0                ; lane*32")
    E("    s_lshl_b32 s12, s10, 11                ; kvh*2048")
    E(f"    s_add_u32 s12, s12, {QG_OFF}")
    E("    v_mov_b32 v7, s34")
    E("    s_mov_b32 s50, 0")
    E("qp_loop:")
    E("    buffer_load_dwordx4 v[8:11], v6, s[24:27], s12 offen sc1")
    E("    buffer_load_dwordx4 v[12:15], v6, s[24:27], s12 offen offset:16 sc1")
    E("    s_waitcnt vmcnt(0)")
    E("    v_cmp_eq_u32 vcc, v9, v7")
    E("    v_cmp_eq_u32 s[52:53], v11, v7")
    E("    s_and_b64 vcc, vcc, s[52:53]")
    E("    v_cmp_eq_u32 s[52:53], v13, v7")
    E("    s_and_b64 vcc, vcc, s[52:53]")
    E("    v_cmp_eq_u32 s[52:53], v15, v7")
    E("    s_and_b64 vcc, vcc, s[52:53]")
    E("    s_add_u32 s50, s50, 1")
    E("    s_cmp_eq_u64 vcc, exec")
    E("    s_cbranch_scc1 qp_done")
    E(f"    s_cmp_lt_u32 s50, {POLL_LIMIT}")
    E("    s_cbranch_scc1 qp_loop")
    E("qp_done:")
    E("    v_mov_b32 v9, v10")
    E("    v_mov_b32 v10, v12")
    E("    v_mov_b32 v11, v14")
    E("    v_lshlrev_b32 v6, 4, v0")
    E(f"    ds_write_b128 v6, v[8:11] offset:{LDS_Q}")
    E("    v_mov_b32 v8, 0")
    E(f"    ds_write_b32 v8, v7 offset:{LDS_Q + 1024}")
    E("    s_waitcnt lgkmcnt(0)")
    stampk2(2)
    E("    s_barrier")
    loadK(0); loadV(0); loadK(1); loadV(1)
    E("att_common:")
    E("    v_mov_b32 v8, 0")
    E(f"    ds_read_b32 v9, v8 offset:{LDS_Q + 1024}")
    E("    s_waitcnt lgkmcnt(0)")
    E("    v_readfirstlane_b32 s34, v9")
    for i in range(16):
        E(f"    v_mov_b32 v{Q0+i}, 0")
    E("    v_lshlrev_b32 v6, 8, v1")
    E("    v_lshl_add_u32 v6, v2, 4, v6")
    E("    v_cmp_gt_u32 vcc, 4, v1")
    E("    s_and_saveexec_b64 s[52:53], vcc")
    for j in range(4):
        E(f"    ds_read_b128 v[{Q0+4*j}:{Q0+4*j+3}], v6 offset:{LDS_Q + j*64}")
    E("    s_mov_b64 exec, s[52:53]")
    E(f"    v_mov_b32 v{M}, 0xff800000")
    E(f"    v_mov_b32 v{L}, 0")
    for i in range(32):
        E(f"    v_mov_b32 v{O0+i}, 0")
    E("    s_waitcnt lgkmcnt(0)")
    for it in range(NIT):
        st = it & 1
        E(f"    s_waitcnt vmcnt({8 + (16 if it+1 < NIT else 0)})")
        for t in range(2):
            for j in range(4):
                b = K0[st] + (t*4+j)*4
                c = "0" if j == 0 else f"v[{S0+4*t}:{S0+4*t+3}]"
                E(f"    v_mfma_f32_16x16x32_bf16 v[{S0+4*t}:{S0+4*t+3}], v[{b}:{b+3}], v[{Q0+4*j}:{Q0+4*j+3}], {c}")
        if it+2 < NIT:
            loadK(it+2)
        E("    s_nop 7")
        E("    s_nop 3")
        for pr in range(4):
            a, b = S0+2*pr, S0+2*pr+1
            E(f"    v_cvt_pk_bf16_f32 v{T0}, v{a}, v{b}")
            E(f"    v_lshlrev_b32 v{a}, 16, v{T0}")
            E(f"    v_and_b32 v{b}, 0xffff0000, v{T0}")
            E(f"    v_mul_f32 v{a}, s30, v{a}")
            E(f"    v_mul_f32 v{b}, s30, v{b}")
            E(f"    v_cvt_pk_bf16_f32 v{T0}, v{a}, v{b}")
            E(f"    v_lshlrev_b32 v{a}, 16, v{T0}")
            E(f"    v_and_b32 v{b}, 0xffff0000, v{T0}")
        E(f"    v_max3_f32 v{T0}, v{S0}, v{S0+1}, v{S0+2}")
        E(f"    v_max3_f32 v{T0}, v{T0}, v{S0+3}, v{S0+4}")
        E(f"    v_max3_f32 v{T0}, v{T0}, v{S0+5}, v{S0+6}")
        E(f"    v_max_f32 v{T0}, v{T0}, v{S0+7}")
        swap_red("v_max_f32", T0, T1, 16)
        E(f"    v_mov_b32 v{T1}, v{T0}")
        E("    s_nop 1")
        E(f"    v_permlane32_swap_b32 v{T0}, v{T1}")
        E("    s_nop 1")
        E(f"    v_max3_f32 v{MN}, v{T0}, v{T1}, v{M}")
        E(f"    v_sub_f32 v{AL}, v{M}, v{MN}")
        E(f"    v_mul_f32 v{AL}, s31, v{AL}")
        E(f"    v_exp_f32 v{AL}, v{AL}")
        E(f"    v_mov_b32 v{M}, v{MN}")
        E(f"    v_mul_f32 v{T2}, s31, v{MN}")
        for i in range(8):
            E(f"    v_fma_f32 v{S0+i}, v{S0+i}, s31, -v{T2}")
        for i in range(8):
            E(f"    v_exp_f32 v{S0+i}, v{S0+i}")
        E("    s_nop 0")
        E(f"    v_add_f32 v{T0}, v{S0}, v{S0+1}")
        E(f"    v_add_f32 v{T1}, v{S0+2}, v{S0+3}")
        E(f"    v_add_f32 v{T2}, v{S0+4}, v{S0+5}")
        E(f"    v_add_f32 v{T3}, v{S0+6}, v{S0+7}")
        E(f"    v_add_f32 v{T0}, v{T0}, v{T1}")
        E(f"    v_add_f32 v{T2}, v{T2}, v{T3}")
        E(f"    v_add_f32 v{T0}, v{T0}, v{T2}")
        E(f"    v_fma_f32 v{L}, v{L}, v{AL}, v{T0}")
        for q in range(4):
            E(f"    v_cvt_pk_bf16_f32 v{P0+q}, v{S0+2*q}, v{S0+2*q+1}")
        for i in range(32):
            E(f"    v_mul_f32 v{O0+i}, v{AL}, v{O0+i}")
        E(f"    s_waitcnt vmcnt({(16 if it+1 < NIT else 0) + (8 if it+2 < NIT else 0)})")
        for d in range(4):
            for q in range(4):
                a = V0[st] + (2*q+1)*4 + d
                b = V0[st] + (2*q)*4 + d
                E(f"    v_perm_b32 v{VT + (2*d)*4 + q}, v{a}, v{b}, s28")
                E(f"    v_perm_b32 v{VT + (2*d+1)*4 + q}, v{a}, v{b}, s29")
        E("    s_nop 1")
        for e in range(8):
            E(f"    v_mfma_f32_16x16x32_bf16 v[{O0+4*e}:{O0+4*e+3}], v[{VT+4*e}:{VT+4*e+3}], v[{P0}:{P0+3}], v[{O0+4*e}:{O0+4*e+3}]")
        if it+2 < NIT:
            loadV(it+2)
        E("    s_nop 7")
        E("    s_nop 3")
    swap_red("v_add_f32", L, T1, 16)
    swap_red("v_add_f32", L, T1, 32)
    E("    v_lshlrev_b32 v8, 11, v3")
    E("    v_lshl_add_u32 v8, v1, 9, v8")
    E("    v_lshl_add_u32 v8, v2, 7, v8")
    E("    v_lshlrev_b32 v9, 5, v3")
    E("    v_lshl_add_u32 v9, v1, 3, v9")
    E("    v_cmp_gt_u32 vcc, 4, v1")
    E("    s_and_saveexec_b64 s[52:53], vcc")
    for e in range(8):
        for jj in range(4):
            E(f"    ds_write_b32 v8, v{O0+4*e+jj} offset:{(jj*8+e)*4}")
    E(f"    v_mov_b32 v10, v{M}")
    E(f"    v_mov_b32 v11, v{L}")
    E("    ds_write_b64 v9, v[10:11] offset:16384")
    E("    s_mov_b64 exec, s[52:53]")
    E("    s_waitcnt lgkmcnt(0)")
    E("    s_barrier")
    stampk2(3)
    WR = 128
    E("    s_cmp_lt_u32 s2, 64")
    E("    s_cbranch_scc1 wl_wo")
    E("    s_cmp_lt_u32 s2, 120")
    E("    s_cbranch_scc1 wl_ffn")
    E("    s_branch wl_done")
    E("wl_wo:")
    E("    s_lshr_b32 s14, s2, 3")
    E("    s_and_b32 s15, s2, 7")
    E("    s_lshl_b32 s12, s14, 19")
    E("    s_lshl_b32 s13, s15, 7")
    E("    s_add_u32 s12, s12, s13")
    srd(36, 72, 4096*512*2)
    E("    v_lshrrev_b32 v6, 3, v0")
    E("    v_and_b32 v7, 7, v0")
    E("    v_lshlrev_b32 v6, 13, v6")
    E("    v_lshl_add_u32 v6, v7, 4, v6")
    E("    s_add_u32 s13, s12, 4096")
    for p in range(8):
        E(f"    buffer_load_dwordx4 v[{WR+4*p}:{WR+4*p+3}], v6, s[36:39], s{12 if p<4 else 13} offen offset:{(p&3)*1024}")
    E("    s_branch wl_done")
    E("wl_ffn:")
    E("    s_sub_u32 s14, s2, 64")
    srd(36, 76, 512*1792*2)
    srd(92, 80, 1792*512*2)
    E("    v_lshrrev_b32 v6, 2, v0")
    E("    v_and_b32 v7, 3, v0")
    E("    s_mov_b32 s12, 14336")
    E("    v_mul_lo_u32 v6, v6, s12")
    E("    v_lshl_add_u32 v6, v7, 4, v6")
    E("    s_lshl_b32 s12, s14, 6")
    E(f"    buffer_load_dwordx4 v[{WR}:{WR+3}], v6, s[36:39], s12 offen")
    E(f"    buffer_load_dwordx4 v[{WR+4}:{WR+7}], v6, s[36:39], s12 offen offset:3584")
    E("    s_add_u32 s13, s12, 7168")
    E(f"    buffer_load_dwordx4 v[{WR+8}:{WR+11}], v6, s[36:39], s13 offen")
    E(f"    buffer_load_dwordx4 v[{WR+12}:{WR+15}], v6, s[36:39], s13 offen offset:3584")
    E("    v_lshlrev_b32 v6, 10, v3")
    E("    v_and_b32 v7, 63, v0")
    E("    v_lshl_add_u32 v6, v7, 4, v6")
    E("    s_lshl_b32 s12, s14, 15")
    for p in range(4):
        E(f"    s_add_u32 s13, s12, {p*8192}")
        E(f"    buffer_load_dwordx4 v[{WR+16+4*p}:{WR+19+4*p}], v6, s[92:95], s13 offen")
    E("wl_done:")
    E("    v_lshrrev_b32 v1, 7, v0                ; head")
    E("    v_and_b32 v2, 127, v0                  ; d")
    E("    v_lshlrev_b32 v4, 3, v1")
    for w in range(8):
        E(f"    ds_read_b64 v[{16+2*w}:{17+2*w}], v4 offset:{16384 + w*32}")
    E("    v_lshlrev_b32 v4, 9, v1")
    E("    v_lshl_add_u32 v4, v2, 2, v4")
    for w in range(8):
        E(f"    ds_read_b32 v{32+w}, v4 offset:{w*2048}")
    E("    s_waitcnt lgkmcnt(0)")
    E("    v_max3_f32 v5, v16, v18, v20")
    E("    v_max3_f32 v5, v5, v22, v24")
    E("    v_max3_f32 v5, v5, v26, v28")
    E("    v_max_f32 v5, v5, v30")
    E("    v_mov_b32 v6, 0")
    E("    v_mov_b32 v12, 0")
    for w in range(8):
        E(f"    v_sub_f32 v8, v{16+2*w}, v5")
        E("    v_mul_f32 v8, s31, v8")
        E("    v_exp_f32 v8, v8")
        E("    s_nop 0")
        E(f"    v_fmac_f32 v6, v8, v{32+w}")
        E(f"    v_fmac_f32 v12, v8, v{17+2*w}")
    E("    s_lshl_b32 s12, s10, 7")
    E("    s_add_u32 s12, s12, s11")
    E("    v_lshlrev_b32 v9, 5, v1")
    E("    v_add_u32 v9, s12, v9")
    E("    v_lshlrev_b32 v10, 10, v9")
    E("    v_lshl_add_u32 v10, v2, 3, v10")
    E("    v_mov_b32 v7, s34")
    E(f"    s_mov_b32 s13, {PART_OFF}")
    E("    buffer_store_dwordx2 v[6:7], v10, s[24:27], s13 offen sc1")
    E("    v_cmp_eq_u32 vcc, 0, v2")
    E("    s_and_saveexec_b64 s[52:53], vcc")
    E("    v_lshlrev_b32 v10, 4, v9")
    E("    v_mov_b32 v12, v12")
    E("    v_mov_b32 v16, v5")
    E("    v_mov_b32 v17, s34")
    E("    v_mov_b32 v18, v12")
    E("    v_mov_b32 v19, s34")
    E(f"    s_mov_b32 s13, {ML_OFF}")
    E("    buffer_store_dwordx4 v[16:19], v10, s[24:27], s13 offen sc1")
    E("    s_mov_b64 exec, s[52:53]")
    E("    s_cmp_lt_u32 s2, 64")
    E("    s_cbranch_scc1 r_wo")
    E("    s_cmp_lt_u32 s2, 120")
    E("    s_cbranch_scc1 r_ffn")
    E("    s_cmp_lt_u32 s2, 128")
    E("    s_cbranch_scc1 r_fin")
    E("    s_branch k2_end")
    E("r_wo:")
    E("    s_barrier")
    E("    s_lshl_b32 s12, s14, 2")
    E("    v_add_u32 v6, s12, v1")
    E("    v_and_b32 v7, 31, v0")
    E("    v_lshlrev_b32 v8, 9, v6                ; ghead*32*16")
    E("    v_lshl_add_u32 v8, v7, 4, v8")
    E(f"    s_mov_b32 s56, {ML_OFF}")
    poll_granules(1, 8, [56], 12, "pml", wide=True)
    stampk2(3+2)
    E("    v_lshlrev_b32 v8, 15, v6               ; ghead*32*1024")
    E("    v_lshl_add_u32 v8, v2, 3, v8")
    for k in range(8):
        E(f"    s_mov_b32 s{56+k}, {PART_OFF + k*4096}")
    poll_granules(32, 8, [56 + (i >> 2) for i in range(32)], 32, "ppo", imm=[(i & 3)*1024 for i in range(32)])
    E("    v_mov_b32 v10, v12")
    wave_reduce("v_max_f32", 10, 11, full=False)
    E("    v_sub_f32 v13, v12, v10")
    E("    v_mul_f32 v13, s31, v13")
    E("    v_exp_f32 v13, v13")
    E("    s_nop 0")
    E("    v_mul_f32 v14, v13, v14")
    wave_reduce("v_add_f32", 14, 15, full=False)
    E("    v_mov_b32 v16, 0")
    for q4 in range(4):
        for k in range(8):
            E(f"    v_readlane_b32 s{40+k}, v13, {q4*8+k}")
        E("    s_nop 1")
        for k in range(8):
            E(f"    v_fmac_f32 v16, s{40+k}, v{32+2*(q4*8+k)}")
    E("    v_rcp_f32 v15, v14")
    E("    s_nop 0")
    E("    v_mul_f32 v17, v16, v15")
    E("    v_fma_f32 v18, -v17, v14, v16")
    E("    v_fma_f32 v16, v18, v15, v17")
    rnd_bf16(16)
    E("    v_lshlrev_b32 v8, 2, v0")
    E("    ds_write_b32 v8, v16")
    E("    s_waitcnt lgkmcnt(0)")
    E("    s_barrier")
    E("    v_lshrrev_b32 v4, 3, v0                ; rs")
    E("    v_and_b32 v5, 7, v0                    ; ch")
    E("    v_lshlrev_b32 v8, 5, v4")
    E("    ds_read_b128 v[16:19], v8")
    E("    ds_read_b128 v[20:23], v8 offset:16")
    for i in range(8):
        E(f"    v_mov_b32 v{64+i}, 0")
    E("    s_waitcnt lgkmcnt(0)")
    for p in range(8):
        gemv_unpack_fma(WR+4*p, 64, f"v{16+p}", 28, 29)
    for i in range(8):
        stride_reduce(64+i, 28, 8)
    E("    v_lshlrev_b32 v6, 8, v3")
    E("    v_lshl_add_u32 v6, v5, 5, v6")
    E("    v_and_b32 v8, 63, v0")
    E("    v_cmp_gt_u32 vcc, 8, v8")
    E("    s_and_saveexec_b64 s[52:53], vcc")
    E("    ds_write_b128 v6, v[64:67] offset:4096")
    E("    ds_write_b128 v6, v[68:71] offset:4112")
    E("    s_mov_b64 exec, s[52:53]")
    E("    s_waitcnt lgkmcnt(0)")
    E("    s_barrier")
    E("    s_cmp_lg_u32 s3, 0")
    E("    s_cbranch_scc1 k2_end")
    E("    v_lshlrev_b32 v6, 2, v0")
    for w in range(8):
        E(f"    ds_read_b32 v{8+w}, v6 offset:{4096 + w*256}")
    E("    s_waitcnt lgkmcnt(0)")
    sum8(8, 8)
    E("    v_mov_b32 v9, s34")
    E("    v_lshlrev_b32 v6, 3, v0")
    E("    s_lshl_b32 s12, s14, 12")
    E("    s_lshl_b32 s13, s15, 9")
    E("    s_add_u32 s12, s12, s13")
    E(f"    s_add_u32 s12, s12, {WOG_OFF}")
    E("    buffer_store_dwordx2 v[8:9], v6, s[24:27], s12 offen sc1")
    stampk2(3+3)
    E("    s_branch k2_end")
    E("r_ffn:")
    E("    s_barrier")
    E("    v_lshrrev_b32 v4, 2, v0                ; rs 0..127")
    E("    v_and_b32 v5, 3, v0                    ; ch")
    srd(36, 64, 1024)
    srd(92, 78, 1792*2)
    E("    v_lshlrev_b32 v6, 1, v0")
    E("    buffer_load_ushort v12, v6, s[36:39], 0 offen")
    E("    v_and_b32 v7, 31, v0")
    E("    v_lshlrev_b32 v7, 1, v7")
    E("    s_lshl_b32 s12, s14, 6")
    E("    buffer_load_ushort v15, v7, s[92:95], s12 offen")
    E("    v_lshlrev_b32 v8, 3, v0")
    for i in range(8):
        E(f"    s_mov_b32 s{56+i}, {WOG_OFF + i*4096}")
    poll_granules(8, 8, list(range(56, 64)), 64, "pf")
    stampk2(3+4)
    for i in range(8):
        E(f"    v_mov_b32 v{16+i}, v{64+2*i}")
    sum8(16, 10)
    rnd_bf16(10)
    E("    v_lshlrev_b32 v12, 16, v12")
    E("    v_add_f32 v10, v10, v12")
    rnd_bf16(10)
    E("    v_mov_b32 v11, v10")
    wave_reduce("v_add_f32", 11, 13)
    E("    v_lshlrev_b32 v14, 2, v3")
    E("    ds_write_b32 v14, v11 offset:4096")
    E("    s_waitcnt lgkmcnt(0)")
    E("    s_barrier")
    E("    v_mov_b32 v13, 0")
    E("    ds_read_b128 v[16:19], v13 offset:4096")
    E("    ds_read_b128 v[20:23], v13 offset:4112")
    E("    s_waitcnt lgkmcnt(0)")
    sum8(16, 11)
    E("    v_mul_f32 v11, s33, v11")
    E("    v_sub_f32 v13, v10, v11")
    E("    v_mul_f32 v24, v13, v13")
    wave_reduce("v_add_f32", 24, 13)
    E("    ds_write_b32 v14, v24 offset:4160")
    E("    s_waitcnt lgkmcnt(0)")
    E("    s_barrier")
    E("    v_mov_b32 v13, 0")
    E("    ds_read_b128 v[16:19], v13 offset:4160")
    E("    ds_read_b128 v[20:23], v13 offset:4176")
    E("    s_waitcnt lgkmcnt(0)")
    sum8(16, 24)
    E("    v_mul_f32 v24, s33, v24")
    rnd_bf16(24)
    E("    v_add_f32 v24, 0x3727c5ac, v24")
    rnd_bf16(24)
    E("    v_sqrt_f32 v24, v24")
    E("    s_nop 0")
    rnd_bf16(24)
    rnd_bf16(11)
    E("    v_sub_f32 v10, v10, v11")
    rnd_bf16(10)
    div_rnd(10, 24, 25, 26, 27)
    E("    v_lshlrev_b32 v6, 2, v0")
    E("    ds_write_b32 v6, v10")
    E("    s_waitcnt lgkmcnt(0)")
    E("    s_barrier")
    E("    v_lshlrev_b32 v8, 4, v4")
    E("    ds_read_b128 v[16:19], v8")
    for i in range(8):
        E(f"    v_mov_b32 v{64+i}, 0")
    E("    s_waitcnt lgkmcnt(0)")
    for p in range(4):
        gemv_unpack_fma(WR+4*p, 64, f"v{16+p}", 28, 29)
    for i in range(8):
        stride_reduce(64+i, 28, 4)
    E("    v_lshlrev_b32 v8, 7, v3")
    E("    v_lshl_add_u32 v8, v5, 5, v8")
    E("    v_and_b32 v10, 63, v0")
    E("    v_cmp_gt_u32 vcc, 4, v10")
    E("    s_and_saveexec_b64 s[52:53], vcc")
    E("    ds_write_b128 v8, v[64:67] offset:4224")
    E("    ds_write_b128 v8, v[68:71] offset:4240")
    E("    s_mov_b64 exec, s[52:53]")
    E("    s_waitcnt lgkmcnt(0)")
    E("    s_barrier")
    E("    v_and_b32 v7, 31, v0")
    E("    v_lshlrev_b32 v8, 2, v7")
    for w in range(8):
        E(f"    ds_read_b32 v{16+w}, v8 offset:{4224 + w*128}")
    E("    s_waitcnt lgkmcnt(0)")
    sum8(16, 16)
    rnd_bf16(16)
    E("    v_lshlrev_b32 v15, 16, v15")
    E("    v_add_f32 v16, v16, v15")
    rnd_bf16(16)
    E("    v_max_f32 v16, 0, v16")
    E("    v_mul_f32 v16, v16, v16")
    rnd_bf16(16)
    E("    s_nop 1")
    for p in range(4):
        E(f"    s_add_u32 s12, s3, {8*p}")
        E("    s_nop 3")
        E(f"    v_readlane_b32 s{44+p}, v16, s12")
    for i in range(8):
        E(f"    v_mov_b32 v{64+i}, 0")
    E("    s_nop 1")
    for p in range(4):
        gemv_unpack_fma(WR+16+4*p, 64, f"s{44+p}", 28, 29)
    E("    v_and_b32 v7, 63, v0")
    E("    v_lshlrev_b32 v8, 11, v3")
    E("    v_lshl_add_u32 v8, v7, 5, v8")
    E("    ds_write_b128 v8, v[64:67] offset:8192")
    E("    ds_write_b128 v8, v[68:71] offset:8208")
    E("    s_waitcnt lgkmcnt(0)")
    E("    s_barrier")
    for w in range(8):
        E(f"    ds_read_b32 v{16+w}, v6 offset:{8192 + w*2048}")
    E("    s_waitcnt lgkmcnt(0)")
    sum8(16, 16)
    E("    v_mov_b32 v17, s34")
    E("    v_lshlrev_b32 v8, 3, v0")
    E("    s_lshl_b32 s12, s14, 12")
    E(f"    s_add_u32 s12, s12, {FFG_OFF}")
    E("    buffer_store_dwordx2 v[16:17], v8, s[24:27], s12 offen sc1")
    stampk2(3+5)
    E("    s_branch k2_end")
    E("r_fin:")
    E("    s_barrier")
    E("    s_sub_u32 s14, s2, 120")
    srd(36, 82, 1024)
    srd(92, 64, 1024)
    E("    v_and_b32 v7, 63, v0")
    E("    s_lshl_b32 s12, s14, 6")
    E("    v_add_u32 v7, s12, v7                  ; col")
    E("    v_lshlrev_b32 v10, 1, v7")
    E("    buffer_load_ushort v12, v10, s[36:39], 0 offen   ; b2")
    E("    buffer_load_ushort v13, v10, s[92:95], 0 offen   ; x")
    E("    v_lshlrev_b32 v8, 3, v7")
    E("    v_lshl_add_u32 v11, v3, 12, v8")
    E(f"    s_mov_b32 s56, {WOG_OFF}")
    for i in range(7):
        E(f"    s_mov_b32 s{57+i}, {FFG_OFF + i*32768}")
    poll_granules(8, 11, list(range(56, 64)), 64, "pz")
    stampk2(3+6)
    for i in range(2, 8):
        E(f"    v_add_f32 v66, v66, v{64+2*i}")
    E("    v_lshlrev_b32 v6, 3, v0")
    E("    v_mov_b32 v65, v66")
    E("    ds_write_b64 v6, v[64:65]")
    E("    s_waitcnt lgkmcnt(0)")
    E("    s_barrier")
    E("    s_cmp_lg_u32 s3, 0")
    E("    s_cbranch_scc1 k2_end")
    for w in range(8):
        E(f"    ds_read_b64 v[{16+2*w}:{17+2*w}], v6 offset:{w*512}")
    E("    s_waitcnt lgkmcnt(0)")
    for (x, y) in ((16,18),(20,22),(24,26),(28,30),(16,20),(24,28),(16,24)):
        E(f"    v_add_f32 v{x}, v{x}, v{y}")
    for (x, y) in ((17,19),(21,23),(25,27),(29,31),(17,21),(25,29),(17,25)):
        E(f"    v_add_f32 v{x}, v{x}, v{y}")
    rnd_bf16(16)
    E("    v_lshlrev_b32 v13, 16, v13")
    E("    v_add_f32 v16, v16, v13")
    rnd_bf16(16)
    rnd_bf16(17)
    E("    v_lshlrev_b32 v12, 16, v12")
    E("    v_add_f32 v17, v17, v12")
    rnd_bf16(17)
    E("    v_add_f32 v17, v17, v16")
    E("    v_cvt_pk_bf16_f32 v17, v17, v17")
    srd(36, 84, 1024)
    E("    buffer_store_short v17, v10, s[36:39], 0 offen")
    stampk2(3+7)
    E("k2_end:")
    E("    s_endpgm")
    kd(name, 256 if TS else 244)

E(HEADER.rstrip())
E("; @launch kernel=k2_attn_kernel grid=(256,1,1) block=(512,1,1) lds=24576")
E('.amdgcn_target "amdgcn-amd-amdhsa--gfx950"')
E(".text")
k2()
open(sys.argv[1], "w").write("\n".join(out) + "\n")
print("ok")
```
